```python
import torch

def _softmax(x, axis=-1):
    return torch.softmax(x, dim=axis)
def _gelu(x):
    return torch.nn.functional.gelu(x, approximate="tanh")
def _silu(x):
    return torch.nn.functional.silu(x)
def _sigmoid(x):
    return torch.sigmoid(x)
def _layernorm(x, axis=-1, eps=1e-5):
    m = x.mean(dim=axis, keepdim=True)
    v = x.var(dim=axis, keepdim=True, unbiased=False)
    return (x - m) / torch.sqrt(v + eps)
def _scatter_add(tgt, idx, src, axis=0):
    return tgt.clone().index_add_(axis, idx, src)
def _segment_sum(src, seg, n):
    out = torch.zeros((n,) + src.shape[1:], dtype=src.dtype)
    return out.index_add_(0, seg, src)
def _pad(x, pw):
    flat = tuple(v for pair in reversed(pw) for v in pair)
    return torch.nn.functional.pad(x, flat)

kernel_name = 'recurrent_scan__mha_block_cached__swiglu_ffn__decode'

def setup_inputs():

    _w = (lambda a: (lambda t: t.to(torch.bfloat16) if t.is_floating_point() else t)(torch.as_tensor(a)))
    def _A_setup():
        B, Sq, D = 2, 1, 512
        H, Sk, Dh = 32, 16384, 128
        return {
            "x": _w((lambda *s: torch.randn(*s, dtype=torch.bfloat16) * 0.05)(B, Sq, D)),
            "k_cache": _w((lambda *s: torch.randn(*s, dtype=torch.bfloat16) * 1.6)(B, H, Sk, Dh)),
            "v_cache": _w((lambda *s: torch.randn(*s, dtype=torch.bfloat16) * 0.2)(B, H, Sk, Dh)),
            "wq": _w((lambda *s: torch.randn(*s, dtype=torch.bfloat16) * 1.6)(D, H * Dh) * (D ** -0.5)),
            "wo": _w((lambda *s: torch.randn(*s, dtype=torch.bfloat16) * 0.2)(H * Dh, D) * ((H * Dh) ** -0.5)),
        }
    _A_in = _A_setup()

    def _B_setup():
        B, S, D, F = 2, 1, 512, 1792
        return {
            "x": _w((lambda *s: torch.randn(*s, dtype=torch.bfloat16) * 0.05)(B, S, D)),
            "w_gate": _w((lambda *s: torch.randn(*s, dtype=torch.bfloat16) * 0.1)(D, F)),
            "w_up": _w((lambda *s: torch.randn(*s, dtype=torch.bfloat16) * 0.1)(D, F)),
            "w_down": _w((lambda *s: torch.randn(*s, dtype=torch.bfloat16) * 0.1)(F, D)),
        }
    _B_in = _B_setup()

    return {
        "A_x": _A_in["x"],
        "A_k_cache": _A_in["k_cache"],
        "A_v_cache": _A_in["v_cache"],
        "A_wq": _A_in["wq"],
        "A_wo": _A_in["wo"],
        "B_x": _B_in["x"],
        "B_w_gate": _B_in["w_gate"],
        "B_w_up": _B_in["w_up"],
        "B_w_down": _B_in["w_down"],
    }

def reference(A_x, A_k_cache, A_v_cache, A_wq, A_wo, B_x, B_w_gate, B_w_up, B_w_down):
    def _A_ref(x, k_cache, v_cache, wq, wo):
        B, Sq, D = x.shape
        H, Dh = 32, 128
        q = (lambda x, *d: x.permute(*d))((x @ wq).reshape(B, Sq, H, Dh), 0, 2, 1, 3)
        scores = torch.einsum("bhqd,bhkd->bhqk", q, k_cache) * (Dh ** -0.5)
        p = _softmax(scores, axis=-1)
        o = torch.einsum("bhqk,bhkd->bhqd", p, v_cache)
        return (lambda x, *d: x.permute(*d))(o, 0, 2, 1, 3).reshape(B, Sq, H * Dh) @ wo

    def _B_ref(x, w_gate, w_up, w_down):
        g = _silu(x @ w_gate)
        u = x @ w_up
        return (g * u) @ w_down

    x = A_x
    xn = _layernorm(x, axis=-1)
    s = _A_ref(xn, A_k_cache, A_v_cache, A_wq, A_wo)
    g = _silu(_B_ref(xn, B_w_gate, B_w_up, B_w_down))
    return x + s * g
```

```python
import sys, struct

KNAME = "recurrent_scan__mha_block_cached__swiglu_ffn__decode_kernel"

def f32(x): return "0x%08x" % struct.unpack("<I", struct.pack("<f", x))[0]

HEADER = open("recurrent_scan__mha_block_cached__swiglu_ffn__decode.s.ref").read().split("; Override launch geometry")[0]

class G:
    def __init__(self, opts):
        self.o = []
        self.opts = opts
    def a(self, s): self.o.append("  " + s)
    def lab(self, s): self.o.append(s + ":")
    def c(self, s): self.o.append("  ; " + s)

def gen(opts):
    g = G(opts); a = g.a; lab = g.lab; c = g.c
    KVF = opts.get("kvflags", "nt")
    DEBUG = opts.get("debug", False)
    STAMP = opts.get("stamp", False)
    sX, sKp, sVp, sWQp, sWOp, sWGp, sWUp = 4, 6, 8, 10, 12, 16, 18
    sWDp, sOUTp, sDBGp, sWSp = 20, 22, 24, 26
    rK, rV, rWQ, rWO, rWS, rDBG, rOUT = 28, 32, 36, 40, 44, 48, 52
    sW, sXc, sKk, sH, sB, sS, sBH = 56, 57, 58, 59, 60, 61, 62
    sT, sN0, sN1, sN2, sN3 = 63, 64, 65, 66, 67
    sCC, sAA = 68, 70
    sT0, sT1, sT2, sT3 = 72, 73, 74, 75
    sP, sCons, sCid, sOnes, sTm = 76, 77, 78, 79, 80
    sC4k, sC8k, sC12k = 81, 82, 83
    sSpin = 84
    sSt = 88
    def srd(r): return f"s[{r}:{r+3}]"
    def sp(r): return f"s[{r}:{r+1}]"
    vL, vG, vC, vKo, vYo, vMLo, vFlo, vM, vLs = 0, 1, 2, 3, 4, 5, 6, 7, 8
    vT0, vT1, vT2 = 9, 10, 11
    vQ, vMask, vA0, vA1, vO = 12, 16, 20, 24, 28
    vP = 32
    vF = 48
    vKr, vVr, vWr = 64, 128, 192
    def v4(r): return f"v[{r}:{r+3}]"
    def v2(r): return f"v[{r}:{r+1}]"
    XN, GU, QP, FP, OP, MLS, CF, CY = 0, 2048, 18432, 22528, 24576, 28672, 29696, 31744
    LDS = 36864
    WS_Y, WS_ML, WS_F, WS_DBG = 0, 1 << 20, 2 << 20, 3 << 20
    WS_SIZE = 4 << 20
    FULL = "row_mask:0xf bank_mask:0xf"

    def rnd_bf16(dst, src):
        a(f"v_cvt_pk_bf16_f32 v{dst}, v{src}, v{src}")
        a(f"v_lshlrev_b32 v{dst}, 16, v{dst}")

    def rowsum(v, op="add"):
        for n in (8, 4, 2, 1):
            a("s_nop 1")
            a(f"v_{op}_f32_dpp v{v}, v{v}, v{v} row_ror:{n} {FULL}")

    def vecmat(src, ring, acc, first_zero, wait=None, post=None):
        def mkA(i):
            A = vA0 if i % 2 == 0 else vA1
            for r in range(4):
                a(f"v_and_b32_dpp v{A+r}, v{src}, v{vMask+r} row_newbcast:{i} {FULL}")
        mkA(0)
        for i in range(16):
            if i < 15: mkA(i + 1)
            else: a("s_nop 1")
            if wait: wait(i)
            A = vA0 if i % 2 == 0 else vA1
            cc = "0" if (first_zero and i == 0) else v4(acc)
            a(f"v_mfma_f32_16x16x32_bf16 {v4(acc)}, {v4(A)}, {v4(ring+4*i)}, {cc}")
            if post: post(i)

    def reduce345(r):
        a("s_nop 1")
        for k in range(4):
            a(f"v_add_f32_dpp v{r+k}, v{r+k}, v{r+k} row_ror:8 {FULL}")
        a("s_nop 1")
        a(f"v_permlane16_swap_b32 v{r}, v{r+1}")
        a(f"v_permlane16_swap_b32 v{r+2}, v{r+3}")
        a("s_nop 1")
        a(f"v_add_f32 v{r}, v{r}, v{r+1}")
        a(f"v_add_f32 v{r+2}, v{r+2}, v{r+3}")
        a("s_nop 1")
        a(f"v_permlane32_swap_b32 v{r}, v{r+2}")
        a("s_nop 1")
        a(f"v_add_f32 v{r}, v{r}, v{r+2}")

    def stamp(k):
        if STAMP:
            a(f"s_memrealtime s[{sSt+2*k}:{sSt+2*k+1}]")

    lab(KNAME)
    a("s_cmp_ge_u32 s2, 256")
    a("s_cbranch_scc1 L_end")
    a("s_load_dwordx16 s[4:19], s[0:1], 0")
    a("s_load_dwordx8 s[20:27], s[0:1], 64")
    stamp(0)
    a(f"v_lshrrev_b32 v{vT0}, 6, v0")
    a(f"v_lshlrev_b32 v{vMLo}, 22, v0")
    a(f"v_lshlrev_b32 v{vFlo}, 8, v0")
    a(f"v_readfirstlane_b32 s{sW}, v{vT0}")
    a(f"v_and_b32 v{vL}, 63, v0")
    a(f"v_lshrrev_b32 v{vG}, 4, v{vL}")
    a(f"v_and_b32 v{vC}, 15, v{vL}")
    a(f"s_and_b32 s{sXc}, s2, 7")
    a(f"s_lshr_b32 s{sKk}, s2, 3")
    a(f"s_and_b32 s{sT0}, s{sKk}, 3")
    a(f"s_lshl_b32 s{sH}, s{sXc}, 2")
    a(f"s_or_b32 s{sH}, s{sH}, s{sT0}")
    a(f"s_lshr_b32 s{sT0}, s{sKk}, 2")
    a(f"s_lshr_b32 s{sB}, s{sT0}, 2")
    a(f"s_and_b32 s{sS}, s{sT0}, 3")
    a(f"s_lshl_b32 s{sBH}, s{sB}, 5")
    a(f"s_or_b32 s{sBH}, s{sBH}, s{sH}")
    a(f"s_lshl_b32 s{sBH}, s{sBH}, 2")
    a(f"s_or_b32 s{sBH}, s{sBH}, s{sS}")
    a(f"s_lshl_b32 s{sT3}, s{sBH}, 20")
    a(f"s_min_u32 s{sT0}, s{sKk}, 27")
    a(f"s_mul_i32 s{sP}, s{sXc}, 28")
    a(f"s_add_u32 s{sP}, s{sP}, s{sT0}")
    a(f"s_lshl_b32 s{sCid}, s{sXc}, 2")
    a(f"s_add_u32 s{sCid}, s{sCid}, s{sKk}")
    a(f"s_sub_u32 s{sCid}, s{sCid}, 28")
    a(f"s_cmp_ge_u32 s{sKk}, 28")
    a(f"s_cselect_b32 s{sCons}, 1, 0")
    vxo, vxp, vwq, vgo, vdo = vP + 9, vP + 10, vP + 11, vP + 12, vP + 13
    a(f"v_lshlrev_b32 v{vxo}, 5, v{vL}")
    a(f"v_lshrrev_b32 v{vT0}, 5, v{vL}")
    a(f"v_and_b32 v{vT1}, 31, v{vL}")
    a(f"v_lshlrev_b32 v{vT1}, 2, v{vT1}")
    a(f"v_lshl_add_u32 v{vxp}, v{vT0}, 10, v{vT1}")
    a(f"s_lshl_b32 s{sT0}, s{sW}, 7")
    a(f"v_add_u32 v{vxp}, s{sT0}, v{vxp}")
    a(f"v_lshlrev_b32 v{vT2}, 4, v{vC}")
    a(f"v_lshl_add_u32 v{vwq}, v{vG}, 17, v{vT2}")
    a(f"s_lshl_b32 s{sT0}, s{sW}, 19")
    a(f"s_lshl_b32 s{sT1}, s{sH}, 8")
    a(f"s_add_u32 s{sT0}, s{sT0}, s{sT1}")
    a(f"v_add_u32 v{vwq}, s{sT0}, v{vwq}")
    a(f"s_movk_i32 s{sT0}, 3584")
    a(f"v_mul_u32_u24 v{vgo}, s{sT0}, v{vL}")
    a(f"s_mul_i32 s{sT0}, s{sW}, {64*3584}")
    a(f"s_lshl_b32 s{sT1}, s{sP}, 4")
    a(f"s_add_u32 s{sT0}, s{sT0}, s{sT1}")
    a(f"v_add_u32 v{vgo}, s{sT0}, v{vgo}")
    a(f"v_lshl_add_u32 v{vdo}, v{vG}, 10, v{vT2}")
    a(f"s_lshl_b32 s{sT0}, s{sP}, 13")
    a(f"s_and_b32 s{sT1}, s{sW}, 3")
    a(f"s_lshl_b32 s{sT1}, s{sT1}, 8")
    a(f"s_add_u32 s{sT0}, s{sT0}, s{sT1}")
    a(f"s_add_u32 s{sT0}, s{sT0}, 2048")
    a(f"v_add_u32 v{vdo}, s{sT0}, v{vdo}")
    a(f"s_lshl_b32 s{sT0}, s{sW}, 14")
    a(f"v_lshlrev_b32 v{vKo}, 4, v{vL}")
    a(f"v_add_u32 v{vKo}, s{sT0}, v{vKo}")
    a(f"v_and_b32 v{vT0}, 1, v{vG}")
    a(f"v_lshlrev_b32 v{vT0}, 4, v{vT0}")
    a(f"v_lshl_add_u32 v{vM}, v{vC}, 5, v{vT0}")
    a(f"s_lshl_b32 s{sT0}, s{sW}, 9")
    a(f"v_add_u32 v{vM}, s{sT0}, v{vM}")
    a(f"v_lshrrev_b32 v{vT0}, 1, v{vG}")
    a(f"v_lshl_add_u32 v{vYo}, v{vT0}, 30, v{vM}")
    a(f"s_lshl_b32 s{sT0}, s{sBH}, 12")
    a(f"v_add_u32 v{vYo}, s{sT0}, v{vYo}")
    a(f"s_lshl_b32 s{sT0}, s{sBH}, 3")
    a(f"s_add_u32 s{sT0}, s{sT0}, {WS_ML}")
    a(f"v_add_u32 v{vMLo}, s{sT0}, v{vMLo}")
    a(f"v_add_u32 v{vFlo}, s2, v{vFlo}")
    for r in range(4): a(f"v_mov_b32 v{vA0+r}, -1")
    for r, n in ((rK, 1 << 20), (rV, 1 << 20), (rWQ, 4 << 20), (rWO, 4 << 20), (rWS, WS_SIZE), (rDBG, 256), (rOUT, 2048)):
        a(f"s_mov_b32 s{r+2}, {n}")
        a(f"s_mov_b32 s{r+3}, 0x20000")
    a(f"s_movk_i32 s{sC4k}, 4096")
    a(f"s_movk_i32 s{sC8k}, 8192")
    a(f"s_movk_i32 s{sC12k}, 12288")
    a("s_waitcnt lgkmcnt(0)")
    a(f"global_load_dwordx4 {v4(vP)}, v{vxo}, {sp(sX)}")
    a(f"global_load_dwordx4 {v4(vP+4)}, v{vxo}, {sp(sX)} offset:16")
    a(f"global_load_dword v{vP+8}, v{vxp}, {sp(sX)}")
    a(f"s_mov_b32 s{rWQ}, s{sWQp}")
    a(f"s_mov_b32 s{rWQ+1}, s{sWQp+1}")
    for i in range(16):
        if i == 0:
            a(f"buffer_load_dwordx4 {v4(vWr)}, v{vwq}, {srd(rWQ)}, 0 offen")
        else:
            a(f"s_mov_b32 s{sT0}, {i*8192}")
            a(f"buffer_load_dwordx4 {v4(vWr+4*i)}, v{vwq}, {srd(rWQ)}, s{sT0} offen")
    a(f"global_load_dwordx4 {v4(vF)}, v{vgo}, {sp(sWGp)}")
    a(f"global_load_dwordx4 {v4(vF+4)}, v{vgo}, {sp(sWUp)}")
    a(f"global_load_dwordx4 {v4(vF+8)}, v{vdo}, {sp(sWDp)} offset:-2048")
    a(f"global_load_dwordx4 {v4(vF+12)}, v{vdo}, {sp(sWDp)} offset:2048")
    a(f"s_mov_b32 s{rWS}, s{sWSp}")
    a(f"s_mov_b32 s{rWS+1}, s{sWSp+1}")
    a(f"s_add_u32 s{rK}, s{sKp}, s{sT3}")
    a(f"s_addc_u32 s{rK+1}, s{sKp+1}, 0")
    a(f"s_add_u32 s{rV}, s{sVp}, s{sT3}")
    a(f"s_addc_u32 s{rV+1}, s{sVp+1}, 0")
    a(f"buffer_store_dwordx4 {v4(vA0)}, v{vYo}, {srd(rWS)}, 0 offen sc1")
    a(f"buffer_store_dwordx2 {v2(vA0)}, v{vMLo}, {srd(rWS)}, 0 offen sc1")
    so4 = ["0", f"s{sC4k}", f"s{sC8k}", f"s{sC12k}"]
    for ring, r in ((vKr, rK), (vVr, rV)):
        for i in range(16):
            a(f"buffer_load_dwordx4 {v4(ring+4*i)}, v{vKo}, {srd(r)}, {so4[i//4]} offen offset:{(i%4)*1024} {KVF}")
    for r, p in ((rWO, sWOp), (rDBG, sDBGp), (rOUT, sOUTp)):
        a(f"s_mov_b32 s{r}, s{p}")
        a(f"s_mov_b32 s{r+1}, s{p+1}")
    a(f"s_mov_b32 s{sCC}, 0xcccccccc"); a(f"s_mov_b32 s{sCC+1}, 0xcccccccc")
    a(f"s_mov_b32 s{sAA}, 0xaaaaaaaa"); a(f"s_mov_b32 s{sAA+1}, 0xaaaaaaaa")
    a(f"s_mov_b32 s{sOnes}, 0x3f803f80")
    a(f"s_mov_b32 s{sSpin}, 0x80000")
    a(f"v_and_b32 v{vT0}, 1, v{vC}")
    a(f"v_lshlrev_b32 v{vT0}, 4, v{vT0}")
    a(f"v_mov_b32 v{vT1}, 0xffff")
    a(f"v_lshlrev_b32 v{vT0}, v{vT0}, v{vT1}")
    a(f"v_bfe_u32 v{vT1}, v{vC}, 1, 2")
    for r in range(4):
        a(f"v_cmp_eq_u32 vcc, {r}, v{vT1}")
        a("s_nop 1")
        a(f"v_cndmask_b32 v{vMask+r}, 0, v{vT0}, vcc")
    c("LayerNorm")
    a("s_waitcnt vmcnt(54)")
    vs, vmn, vacc0, vacc1, vt, vu = vP + 9, vP + 10, vP + 11, vP + 12, vP + 13, vP + 14
    a(f"v_dot2_f32_bf16 v{vs}, v{vP}, s{sOnes}, 0")
    for r in range(1, 8):
        a(f"v_dot2_f32_bf16 v{vs}, v{vP+r}, s{sOnes}, v{vs}")
    a("s_nop 1")
    rowsum(vs)
    a(f"v_mov_b32 v{vt}, v{vs}")
    a("s_nop 1")
    a(f"v_permlane16_swap_b32 v{vt}, v{vs}")
    a("s_nop 1")
    a(f"v_add_f32 v{vs}, v{vs}, v{vt}")
    a(f"v_mul_f32 v{vmn}, {f32(1/512)}, v{vs}")
    a(f"v_mov_b32 v{vacc0}, 0")
    a(f"v_mov_b32 v{vacc1}, 0")
    for r in range(8):
        a(f"v_lshlrev_b32 v{vt}, 16, v{vP+r}")
        a(f"v_and_b32 v{vu}, 0xffff0000, v{vP+r}")
        a(f"v_sub_f32 v{vt}, v{vt}, v{vmn}")
        a(f"v_sub_f32 v{vu}, v{vu}, v{vmn}")
        a(f"v_fmac_f32 v{vacc0}, v{vt}, v{vt}")
        a(f"v_fmac_f32 v{vacc1}, v{vu}, v{vu}")
    a(f"v_add_f32 v{vs}, v{vacc0}, v{vacc1}")
    rowsum(vs)
    a(f"v_mov_b32 v{vt}, v{vs}")
    a("s_nop 1")
    a(f"v_permlane16_swap_b32 v{vt}, v{vs}")
    a("s_nop 1")
    a(f"v_add_f32 v{vs}, v{vs}, v{vt}")
    a(f"v_mul_f32 v{vs}, {f32(1/512)}, v{vs}")
    rnd_bf16(vs, vs)
    a(f"v_add_f32 v{vs}, {f32(1e-5)}, v{vs}")
    rnd_bf16(vs, vs)
    a(f"v_sqrt_f32 v{vs}, v{vs}")
    rnd_bf16(vmn, vmn)
    rnd_bf16(vs, vs)
    a(f"v_rcp_f32 v{vs}, v{vs}")
    a(f"v_lshlrev_b32 v{vt}, 16, v{vP+8}")
    a(f"v_and_b32 v{vu}, 0xffff0000, v{vP+8}")
    a(f"v_sub_f32 v{vt}, v{vt}, v{vmn}")
    a(f"v_sub_f32 v{vu}, v{vu}, v{vmn}")
    a(f"v_cvt_pk_bf16_f32 v{vu}, v{vt}, v{vu}")
    a(f"v_lshlrev_b32 v{vt}, 16, v{vu}")
    a(f"v_and_b32 v{vu}, 0xffff0000, v{vu}")
    a(f"v_mul_f32 v{vt}, v{vt}, v{vs}")
    a(f"v_mul_f32 v{vu}, v{vu}, v{vs}")
    a(f"v_cvt_pk_bf16_f32 v{vu}, v{vt}, v{vu}")
    a(f"s_lshl_b32 s{sT0}, s{sW}, 8")
    a(f"v_lshl_add_u32 v{vt}, v{vL}, 2, s{sT0}")
    a(f"ds_write_b32 v{vt}, v{vu} offset:{XN}")
    a(f"s_lshl_b32 s{sT1}, s{sB}, 7")
    a(f"s_add_u32 s{sT1}, s{sT1}, s{sT0}")
    a(f"v_lshl_add_u32 v{vt}, v{vL}, 1, s{sT1}")
    a(f"v_and_b32 v{vu}, 1, v{vC}")
    a(f"v_lshlrev_b32 v{vu}, 7, v{vu}")
    a(f"v_lshl_add_u32 v{vu}, v{vG}, 4, v{vu}")
    a(f"v_add_u32 v{vu}, s{sT0}, v{vu}")
    a("s_waitcnt lgkmcnt(0)")
    a(f"ds_read_u16 v{vT0}, v{vt} offset:{XN}")
    a(f"ds_read_b128 {v4(vP)}, v{vu} offset:{XN}")
    a(f"ds_read_b128 {v4(vP+4)}, v{vu} offset:{XN+64}")
    a("s_waitcnt lgkmcnt(2)")
    a(f"v_lshl_or_b32 v{vT0}, v{vT0}, 16, v{vT0}")
    c("q projection")
    a("s_waitcnt vmcnt(38)")
    a("s_nop 0")
    vecmat(vT0, vWr, vO, True)
    c("FFN stage 1")
    a("s_waitcnt vmcnt(36)")
    a(f"s_lshl_b32 s{sT0}, s{sW}, 11")
    a(f"v_lshl_add_u32 v{vT0}, v{vL}, 5, s{sT0}")
    a(f"ds_write_b128 v{vT0}, {v4(vF)} offset:{GU}")
    a(f"ds_write_b128 v{vT0}, {v4(vF+4)} offset:{GU+16}")
    a(f"v_lshrrev_b32 v{vT0}, 2, v{vC}")
    a(f"v_lshlrev_b32 v{vT0}, 5, v{vT0}")
    a(f"v_lshl_add_u32 v{vT0}, v{vG}, 8, v{vT0}")
    a(f"v_and_b32 v{vT1}, 3, v{vC}")
    a(f"v_lshl_add_u32 v{vT0}, v{vT1}, 3, v{vT0}")
    a(f"v_add_u32 v{vT0}, s{sT0}, v{vT0}")
    a(f"ds_write_b128 v{vM}, {v4(vO)} offset:{QP}")
    a("s_waitcnt lgkmcnt(0)")
    a(f"ds_read_b64_tr_b16 {v2(vP+8)}, v{vT0} offset:{GU}")
    a(f"ds_read_b64_tr_b16 {v2(vP+10)}, v{vT0} offset:{GU+128}")
    a(f"ds_read_b64_tr_b16 {v2(vP+12)}, v{vT0} offset:{GU+1024}")
    a(f"ds_read_b64_tr_b16 {v2(vP+14)}, v{vT0} offset:{GU+1024+128}")
    a(f"v_lshl_add_u32 v{vT1}, v{vG}, 14, v{vT2}")
    a(f"s_lshl_b32 s{sT0}, s{sH}, 17")
    a(f"s_lshr_b32 s{sT1}, s{sW}, 2")
    a(f"s_lshl_b32 s{sT1}, s{sT1}, 16")
    a(f"s_add_u32 s{sT0}, s{sT0}, s{sT1}")
    a(f"s_and_b32 s{sT1}, s{sW}, 3")
    a(f"s_lshl_b32 s{sT1}, s{sT1}, 8")
    a(f"s_add_u32 s{sT0}, s{sT0}, s{sT1}")
    a(f"v_add_u32 v{vT1}, s{sT0}, v{vT1}")
    for i in range(16):
        a(f"buffer_load_dwordx4 {v4(vWr+4*i)}, v{vT1}, {srd(rWO)}, {so4[i//4]} offen offset:{(i%4)*1024}")
    a("s_waitcnt lgkmcnt(0)")
    a(f"v_mfma_f32_16x16x32_bf16 {v4(vA0)}, {v4(vP)}, {v4(vP+8)}, 0")
    a(f"v_mfma_f32_16x16x32_bf16 {v4(vA0)}, {v4(vP+4)}, {v4(vP+12)}, {v4(vA0)}")
    a(f"s_lshl_b32 s{sT0}, s{sW}, 7")
    a(f"v_lshl_add_u32 v{vT0}, v{vC}, 2, s{sT0}")
    a("s_nop 7")
    a(f"ds_write_b32 v{vT0}, v{vA0} offset:{FP}")
    a(f"ds_write_b32 v{vT0}, v{vA0+1} offset:{FP+64}")
    a("s_waitcnt lgkmcnt(0)")
    a("s_barrier")
    c("q reduce")
    a(f"v_lshlrev_b32 v{vT0}, 3, v{vL}")
    for w in range(8):
        a(f"ds_read_b64 {v2(vP+2*w)}, v{vT0} offset:{QP+512*w}")
    a(f"v_and_b32 v{vT1}, 31, v{vL}")
    a(f"v_lshlrev_b32 v{vT1}, 2, v{vT1}")
    for w in range(8):
        a(f"ds_read_b32 v{vF+w}, v{vT1} offset:{FP+128*w}")
    a("s_waitcnt lgkmcnt(8)")
    for w in range(1, 8):
        a(f"v_add_f32 v{vP}, v{vP}, v{vP+2*w}")
        a(f"v_add_f32 v{vP+1}, v{vP+1}, v{vP+2*w+1}")
    a(f"v_cvt_pk_bf16_f32 v{vP}, v{vP}, v{vP+1}")
    for r in range(4):
        a(f"ds_bpermute_b32 v{vQ+r}, v{vT2}, v{vP} offset:{4*r}")
    c("FFN stage 2 (waves 0-3 of non-consumer WGs)")
    a(f"s_cmp_ge_u32 s{sW}, 4")
    a("s_cbranch_scc1 L_ffn_done")
    a(f"s_cmp_eq_u32 s{sCons}, 1")
    a("s_cbranch_scc1 L_ffn_done")
    a("s_waitcnt lgkmcnt(4)")
    for w in range(1, 8):
        a(f"v_add_f32 v{vF}, v{vF}, v{vF+w}")
    rnd_bf16(vF, vF)
    a(f"v_mul_f32 v{vF+1}, {f32(-1.4426950408889634)}, v{vF}")
    a(f"v_exp_f32 v{vF+1}, v{vF+1}")
    a("s_nop 0")
    a(f"v_add_f32 v{vF+1}, 1.0, v{vF+1}")
    a(f"v_rcp_f32 v{vF+1}, v{vF+1}")
    a("s_nop 0")
    a(f"v_mul_f32 v{vF+1}, v{vF}, v{vF+1}")
    rnd_bf16(vF + 1, vF + 1)
    a(f"v_mul_f32_dpp v{vF+1}, v{vF}, v{vF+1} row_ror:8 {FULL}")
    a(f"v_cvt_pk_bf16_f32 v{vF+1}, v{vF+1}, v{vF+1}")
    a(f"v_lshrrev_b32 v{vT0}, 3, v{vC}")
    a(f"v_lshlrev_b32 v{vT0}, 6, v{vT0}")
    a(f"v_lshl_add_u32 v{vT0}, v{vG}, 2, v{vT0}")
    a(f"ds_bpermute_b32 v{vF+2}, v{vT0}, v{vF+1}")
    a(f"ds_bpermute_b32 v{vF+3}, v{vT0}, v{vF+1} offset:16")
    a(f"v_lshrrev_b32 v{vT0}, 1, v{vG}")
    a(f"v_lshlrev_b32 v{vT0}, 4, v{vT0}")
    a(f"v_lshrrev_b32 v{vT1}, 2, v{vC}")
    a(f"v_add_u32 v{vT0}, v{vT0}, v{vT1}")
    a(f"s_movk_i32 s{sT0}, 28672")
    a(f"v_mul_u32_u24 v{vT0}, s{sT0}, v{vT0}")
    a(f"v_and_b32 v{vT1}, 0x7f, v{vM}")
    a(f"v_add_u32 v{vT0}, v{vT0}, v{vT1}")
    a(f"s_mul_i32 s{sT0}, s{sW}, {4*28672}")
    a(f"s_lshl_b32 s{sT1}, s{sP}, 7")
    a(f"s_add_u32 s{sT0}, s{sT0}, s{sT1}")
    a(f"s_add_u32 s{sT0}, s{sT0}, {WS_F}")
    a(f"v_add_u32 v{vT0}, s{sT0}, v{vT0}")
    a("s_waitcnt lgkmcnt(0)")
    for r in range(4): a(f"v_and_b32 v{vA0+r}, v{vF+2}, v{vMask+r}")
    for r in range(4): a(f"v_and_b32 v{vA1+r}, v{vF+3}, v{vMask+r}")
    a("s_waitcnt vmcnt(50)")
    a("s_nop 0")
    a(f"v_mfma_f32_16x16x32_bf16 {v4(vF+4)}, {v4(vA0)}, {v4(vF+8)}, 0")
    a(f"v_mfma_f32_16x16x32_bf16 {v4(vF+4)}, {v4(vA1)}, {v4(vF+12)}, {v4(vF+4)}")
    a("s_nop 7")
    a(f"buffer_store_dwordx4 {v4(vF+4)}, v{vT0}, {srd(rWS)}, 0 offen sc1")
    lab("L_ffn_done")
    a(f"v_mov_b32 v{vM}, {f32(-3.0e38)}")
    a(f"v_mov_b32 v{vLs}, 0")
    for r in range(4): a(f"v_mov_b32 v{vO+r}, 0")
    a(f"s_mov_b32 s{sT}, 0")
    a(f"s_mov_b32 s{sN0}, 0x20000")
    a(f"s_mov_b32 s{sN1}, 0x21000")
    a(f"s_mov_b32 s{sN2}, 0x22000")
    a(f"s_mov_b32 s{sN3}, 0x23000")
    a("s_waitcnt lgkmcnt(0)")
    if DEBUG:
        a(f"s_lshl_b32 s{sT0}, s2, 10")
        a(f"s_add_u32 s{sT0}, s{sT0}, {WS_DBG}")
        a(f"v_lshl_add_u32 v{vT0}, v{vL}, 4, s{sT0}")
        a(f"buffer_store_dwordx4 {v4(vQ)}, v{vT0}, {srd(rWS)}, 0 offen")
    stamp(1)
    sN = [sN0, sN1, sN2, sN3]
    c("main loop")
    a(".p2align 6")
    lab("L_loop")
    for i in range(16):
        a("s_waitcnt vmcnt(31)")
        k = vKr + 4 * i
        a(f"v_dot2_f32_bf16 v{vP+i}, v{k}, v{vQ}, 0")
        for r in range(1, 4):
            a(f"v_dot2_f32_bf16 v{vP+i}, v{k+r}, v{vQ+r}, v{vP+i}")
        a(f"buffer_load_dwordx4 {v4(k)}, v{vKo}, {srd(rK)}, s{sN[i//4]} offen offset:{(i%4)*1024} {KVF}")
    for i in range(8):
        a(f"v_add_f32_dpp v{vP+i}, v{vP+i}, v{vP+i} row_ror:8 row_mask:0xf bank_mask:0x3")
    for i in range(8):
        a(f"v_add_f32_dpp v{vP+i}, v{vP+i+8}, v{vP+i+8} row_ror:8 row_mask:0xf bank_mask:0xc")
    for i in range(4):
        a(f"v_add_f32_dpp v{vP+i}, v{vP+i}, v{vP+i} row_shl:4 row_mask:0xf bank_mask:0x5")
    for i in range(4):
        a(f"v_add_f32_dpp v{vP+i}, v{vP+i+4}, v{vP+i+4} row_shr:4 row_mask:0xf bank_mask:0xa")
    a("s_nop 0")
    for i in range(4):
        a(f"v_add_f32_dpp v{vP+i}, v{vP+i}, v{vP+i} quad_perm:[2,3,0,1] {FULL}")
    a(f"v_cndmask_b32 v{vP}, v{vP}, v{vP+2}, {sp(sCC)}")
    a(f"v_cndmask_b32 v{vP+1}, v{vP+1}, v{vP+3}, {sp(sCC)}")
    a("s_nop 0")
    a(f"v_add_f32_dpp v{vP}, v{vP}, v{vP} quad_perm:[1,0,3,2] {FULL}")
    a(f"v_add_f32_dpp v{vP+1}, v{vP+1}, v{vP+1} quad_perm:[1,0,3,2] {FULL}")
    a(f"v_cndmask_b32 v{vP}, v{vP}, v{vP+1}, {sp(sAA)}")
    rnd_bf16(vP, vP)
    a(f"v_mul_f32 v{vP}, {f32(128 ** -0.5)}, v{vP}")
    rnd_bf16(vP, vP)
    tm = vP + 1
    a("s_nop 1")
    a(f"v_max_f32_dpp v{tm}, v{vP}, v{vP} row_ror:8 {FULL}")
    for n in (4, 2, 1):
        a("s_nop 1")
        a(f"v_max_f32_dpp v{tm}, v{tm}, v{tm} row_ror:{n} {FULL}")
    a("s_nop 1")
    a(f"v_max_f32_dpp v{tm}, v{tm}, v{tm} row_bcast:15 row_mask:0xa bank_mask:0xf")
    a("s_nop 1")
    a(f"v_max_f32_dpp v{tm}, v{tm}, v{tm} row_bcast:31 row_mask:0xc bank_mask:0xf")
    a("s_nop 0")
    a(f"v_readlane_b32 s{sTm}, v{tm}, 63")
    a("s_nop 1")
    a(f"v_max_f32 v{tm}, s{sTm}, v{vM}")
    al, pp = vP + 2, vP + 3
    a(f"v_sub_f32 v{al}, v{vM}, v{tm}")
    a(f"v_sub_f32 v{pp}, v{vP}, v{tm}")
    a(f"v_mul_f32 v{al}, {f32(1.4426950408889634)}, v{al}")
    a(f"v_mul_f32 v{pp}, {f32(1.4426950408889634)}, v{pp}")
    a(f"v_exp_f32 v{al}, v{al}")
    a(f"v_exp_f32 v{pp}, v{pp}")
    a(f"v_mov_b32 v{vM}, v{tm}")
    a(f"v_fma_f32 v{vLs}, v{vLs}, v{al}, v{pp}")
    a(f"v_cvt_pk_bf16_f32 v{pp}, v{pp}, v{pp}")
    for r in range(4): a(f"v_mul_f32 v{vO+r}, v{vO+r}, v{al}")
    def vwait(i): a("s_waitcnt vmcnt(31)")
    def vpost(i):
        a(f"buffer_load_dwordx4 {v4(vVr+4*i)}, v{vKo}, {srd(rV)}, s{sN[i//4]} offen offset:{(i%4)*1024} {KVF}")
    vecmat(pp, vVr, vO, False, vwait, vpost)
    for s in sN: a(f"s_add_u32 s{s}, s{s}, 0x20000")
    a(f"s_add_u32 s{sT}, s{sT}, 1")
    a(f"s_cmp_eq_u32 s{sT}, 1")
    a("s_cbranch_scc1 L_hook_flag")
    a(f"s_cmp_lt_u32 s{sT}, 6")
    a("s_cbranch_scc1 L_loop")
    a(f"s_cmp_eq_u32 s{sT}, 8")
    a("s_cbranch_scc1 L_tail")
    a(f"s_cmp_eq_u32 s{sCons}, 0")
    a("s_cbranch_scc1 L_loop")
    a(f"v_lshlrev_b32 v{vT0}, 2, v{vL}")
    a(f"s_cmp_eq_u32 s{sT}, 7")
    a("s_cbranch_scc1 L_hook_check")
    a(f"buffer_load_dword v{vT1}, v{vT0}, {srd(rDBG)}, 0 offen sc1")
    a("s_branch L_loop")
    lab("L_hook_flag")
    a("s_barrier")
    a(f"v_mov_b32 v{vT0}, 1")
    a(f"buffer_store_byte v{vT0}, v{vFlo}, {srd(rDBG)}, 0 offen sc1")
    a("s_branch L_loop")
    lab("L_hook_check")
    a(f"v_cmp_ne_u32 vcc, 0x01010101, v{vT1}")
    a("s_nop 4")
    a("s_cbranch_vccz L_hook_ok")
    a(f"s_sub_u32 s{sSpin}, s{sSpin}, 1")
    a("s_cbranch_scc1 L_hook_ok")
    a("s_sleep 4")
    a(f"buffer_load_dword v{vT1}, v{vT0}, {srd(rDBG)}, 0 offen sc1")
    a("s_waitcnt vmcnt(0)")
    a("s_branch L_hook_check")
    lab("L_hook_ok")
    a(f"s_mul_i32 s{sT0}, s{sCid}, 28672")
    a(f"s_lshl_b32 s{sT1}, s{sW}, 12")
    a(f"s_add_u32 s{sT0}, s{sT0}, s{sT1}")
    a(f"s_add_u32 s{sT0}, s{sT0}, {WS_F}")
    a(f"s_cmp_eq_u32 s{sW}, 7")
    a(f"s_cselect_b32 s{sT0}, 0x40000000, s{sT0}")
    a(f"v_lshl_add_u32 v{vT0}, v{vL}, 4, s{sT0}")
    for i in range(4):
        a(f"buffer_load_dwordx4 {v4(vF+4*i)}, v{vT0}, {srd(rWS)}, 0 offen offset:{i*1024} sc1")
    a(f"v_and_b32 v{vT2}, 7, v{vL}")
    a(f"v_lshl_add_u32 v{vT2}, v{vT2}, 2, v{vG}")
    a(f"s_lshl_b32 s{sT0}, s{sCid}, 6")
    a(f"v_lshl_add_u32 v{vT2}, v{vT2}, 1, s{sT0}")
    a(f"global_load_ushort v{vT1}, v{vT2}, {sp(sX)}")
    a("s_branch L_loop")
    lab("L_tail")
    stamp(2)
    rowsum(vLs)
    a(f"v_mov_b32 v{vT0}, v{vLs}")
    a("s_nop 1")
    a(f"v_permlane16_swap_b32 v{vT0}, v{vLs}")
    a("s_nop 1")
    a(f"v_add_f32 v{vLs}, v{vLs}, v{vT0}")
    a(f"v_mov_b32 v{vT0}, v{vLs}")
    a("s_nop 1")
    a(f"v_permlane32_swap_b32 v{vT0}, v{vLs}")
    a("s_nop 1")
    a(f"v_add_f32 v{vP+1}, v{vLs}, v{vT0}")
    a(f"v_mov_b32 v{vP}, v{vM}")
    a(f"v_and_b32 v{vP+2}, 0xfff, v{vYo}")
    a(f"s_lshl_b32 s{sT0}, s{sW}, 3")
    a(f"v_mov_b32 v{vP+3}, s{sT0}")
    a(f"ds_write_b128 v{vP+2}, {v4(vO)} offset:{OP}")
    a(f"ds_write_b64 v{vP+3}, {v2(vP)} offset:{MLS}")
    a(f"s_cmp_eq_u32 s{sCons}, 0")
    a("s_cbranch_scc1 L_tail_bar")
    for r in range(4):
        a(f"v_add_f32 v{vF+r}, v{vF+r}, v{vF+4+r}")
        a(f"v_add_f32 v{vF+8+r}, v{vF+8+r}, v{vF+12+r}")
    for r in range(4):
        a(f"v_add_f32 v{vF+r}, v{vF+r}, v{vF+8+r}")
    reduce345(vF)
    a(f"s_lshl_b32 s{sT0}, s{sW}, 8")
    a(f"v_lshl_add_u32 v{vF+1}, v{vL}, 2, s{sT0}")
    a(f"ds_write_b32 v{vF+1}, v{vF} offset:{CF}")
    lab("L_tail_bar")
    a(f"v_and_b32 v{vP+4}, 7, v{vL}")
    a(f"v_lshlrev_b32 v{vP+4}, 3, v{vP+4}")
    a(f"s_lshr_b32 s{sT0}, s{sW}, 2")
    a(f"s_lshl_b32 s{sT0}, s{sT0}, 8")
    a(f"v_lshl_add_u32 v{vP+5}, v{vL}, 2, s{sT0}")
    a("s_waitcnt lgkmcnt(0)")
    a("s_barrier")
    a(f"ds_read_b64 {v2(vP)}, v{vP+4} offset:{MLS}")
    for w in range(8):
        a(f"ds_read_b32 v{vP+8+w}, v{vP+5} offset:{OP+512*w}")
    a("s_waitcnt lgkmcnt(8)")
    mx, e = vP + 2, vP + 3
    a(f"v_max_f32_dpp v{mx}, v{vP}, v{vP} row_ror:4 {FULL}")
    for n in (2, 1):
        a("s_nop 1")
        a(f"v_max_f32_dpp v{mx}, v{mx}, v{mx} row_ror:{n} {FULL}")
    a(f"v_sub_f32 v{vP+4}, v{vP}, v{mx}")
    a(f"v_mul_f32 v{vP+4}, {f32(1.4426950408889634)}, v{vP+4}")
    a(f"v_exp_f32 v{vP+4}, v{vP+4}")
    a("s_nop 0")
    a(f"v_mul_f32 v{e}, v{vP+4}, v{vP+1}")
    a("s_waitcnt lgkmcnt(0)")
    a(f"v_mul_f32_dpp v{vP+5}, v{vP+4}, v{vP+8} row_newbcast:0 {FULL}")
    for w in range(1, 8):
        a(f"v_fmac_f32_dpp v{vP+5}, v{vP+4}, v{vP+8+w} row_newbcast:{w} {FULL}")
    a(f"v_cvt_pk_bf16_f32 v{vP+5}, v{vP+5}, v{vP+5}")
    for n in (4, 2, 1):
        a(f"v_add_f32_dpp v{e}, v{e}, v{e} row_ror:{n} {FULL}")
        a("s_nop 1")
    a(f"v_min_u32 v{mx}, -2, v{mx}")
    a(f"v_min_u32 v{e}, -2, v{e}")
    a(f"buffer_store_dwordx2 {v2(mx)}, v{vMLo}, {srd(rWS)}, 0 offen sc1")
    vecmat(vP + 5, vWr, vO, True)
    a("s_nop 7")
    for r in range(4): a(f"v_min_u32 v{vO+r}, -2, v{vO+r}")
    a(f"buffer_store_dwordx4 {v4(vO)}, v{vYo}, {srd(rWS)}, 0 offen sc1")
    a(f"s_cmp_eq_u32 s{sCons}, 0")
    a("s_cbranch_scc1 L_fin")
    vy, vml = vP, vP + 1
    a(f"v_and_b32 v{vy}, 7, v{vL}")
    a(f"v_lshlrev_b32 v{vy}, 4, v{vy}")
    a(f"v_bfe_u32 v{vml}, v{vL}, 3, 1")
    a(f"v_lshl_add_u32 v{vy}, v{vml}, 11, v{vy}")
    a(f"v_lshl_add_u32 v{vy}, v{vG}, 14, v{vy}")
    a(f"s_lshr_b32 s{sT0}, s{sCid}, 4")
    a(f"s_lshl_b32 s{sT0}, s{sT0}, 5")
    a(f"s_lshl_b32 s{sT1}, s{sW}, 2")
    a(f"s_add_u32 s{sT0}, s{sT0}, s{sT1}")
    a(f"s_lshl_b32 s{sT1}, s{sT0}, 14")
    a(f"s_and_b32 s{sT2}, s{sCid}, 15")
    a(f"s_lshl_b32 s{sT2}, s{sT2}, 7")
    a(f"s_add_u32 s{sT1}, s{sT1}, s{sT2}")
    a(f"v_add_u32 v{vy}, s{sT1}, v{vy}")
    a(f"s_lshl_b32 s{sT1}, s{sT0}, 5")
    a(f"s_add_u32 s{sT1}, s{sT1}, {WS_ML}")
    a(f"v_lshl_add_u32 v{vml}, v{vG}, 5, s{sT1}")
    Y, ML = vKr, vKr + 16
    a("s_waitcnt vmcnt(2)")
    def poll_loads():
        for s in range(4):
            a(f"buffer_load_dwordx4 {v4(Y+4*s)}, v{vy}, {srd(rWS)}, {so4[s]} offen sc1")
        a(f"buffer_load_dwordx4 {v4(ML)}, v{vml}, {srd(rWS)}, 0 offen sc1")
        a(f"buffer_load_dwordx4 {v4(ML+4)}, v{vml}, {srd(rWS)}, 0 offen offset:16 sc1")
    poll_loads()
    vg = vF + 2
    a(f"s_cmp_lg_u32 s{sW}, 0")
    a("s_cbranch_scc1 L_poll")
    for w in range(8):
        a(f"ds_read_b32 v{vF+4+w}, v{vF+1} offset:{CF+256*w}")
    a("s_waitcnt lgkmcnt(0)")
    for w in range(1, 8):
        a(f"v_add_f32 v{vF+4}, v{vF+4}, v{vF+4+w}")
    rnd_bf16(vF + 4, vF + 4)
    a(f"v_mul_f32 v{vg}, {f32(-1.4426950408889634)}, v{vF+4}")
    a(f"v_exp_f32 v{vg}, v{vg}")
    a("s_nop 0")
    a(f"v_add_f32 v{vg}, 1.0, v{vg}")
    a(f"v_rcp_f32 v{vg}, v{vg}")
    a("s_nop 0")
    a(f"v_mul_f32 v{vg}, v{vF+4}, v{vg}")
    rnd_bf16(vg, vg)
    a(f"v_lshlrev_b32 v{vT1}, 16, v{vT1}")
    lab("L_poll")
    a("s_waitcnt vmcnt(0)")
    t = vP + 2
    a(f"v_max3_u32 v{t}, v{Y}, v{Y+1}, v{Y+2}")
    for r in range(3, 23, 2):
        a(f"v_max3_u32 v{t}, v{Y+r}, v{Y+r+1}, v{t}")
    a(f"v_max_u32 v{t}, v{Y+23}, v{t}")
    a(f"v_cmp_eq_u32 vcc, -1, v{t}")
    a("s_nop 4")
    a("s_cbranch_vccz L_poll_done")
    a(f"s_sub_u32 s{sSpin}, s{sSpin}, 1")
    a("s_cbranch_scc1 L_poll_done")
    a("s_mov_b64 exec, vcc")
    poll_loads()
    a("s_branch L_poll")
    lab("L_poll_done")
    a("s_mov_b64 exec, -1")
    mh = vP + 2
    a(f"v_max3_f32 v{mh}, v{ML}, v{ML+2}, v{ML+4}")
    a(f"v_max_f32 v{mh}, v{ML+6}, v{mh}")
    for s in range(4): a(f"v_sub_f32 v{ML+2*s}, v{ML+2*s}, v{mh}")
    for s in range(4): a(f"v_mul_f32 v{ML+2*s}, {f32(1.4426950408889634)}, v{ML+2*s}")
    for s in range(4): a(f"v_exp_f32 v{ML+2*s}, v{ML+2*s}")
    a(f"v_mul_f32 v{mh}, v{ML}, v{ML+1}")
    for s in range(1, 4): a(f"v_fmac_f32 v{mh}, v{ML+2*s}, v{ML+2*s+1}")
    a(f"v_rcp_f32 v{mh}, v{mh}")
    acc = vP + 4
    for r in range(4): a(f"v_mul_f32 v{acc+r}, v{ML}, v{Y+r}")
    for s in range(1, 4):
        for r in range(4): a(f"v_fmac_f32 v{acc+r}, v{ML+2*s}, v{Y+4*s+r}")
    for r in range(4): a(f"v_mul_f32 v{acc+r}, v{acc+r}, v{mh}")
    reduce345(acc)
    a(f"ds_write_b32 v{vF+1}, v{acc} offset:{CY}")
    a("s_waitcnt lgkmcnt(0)")
    a("s_barrier")
    a(f"s_cmp_lg_u32 s{sW}, 0")
    a("s_cbranch_scc1 L_fin")
    for w in range(8):
        a(f"ds_read_b32 v{vF+4+w}, v{vF+1} offset:{CY+256*w}")
    a(f"v_bfe_u32 v{vP}, v{vL}, 3, 1")
    a(f"v_lshl_add_u32 v{vT2}, v{vP}, 20, v{vT2}")
    a("s_waitcnt lgkmcnt(0)")
    for w in range(1, 8):
        a(f"v_add_f32 v{vF+4}, v{vF+4}, v{vF+4+w}")
    rnd_bf16(vF + 4, vF + 4)
    a(f"v_mul_f32 v{vF+4}, v{vF+4}, v{vg}")
    rnd_bf16(vF + 4, vF + 4)
    a(f"v_add_f32 v{vF+4}, v{vF+4}, v{vT1}")
    a(f"v_cvt_pk_bf16_f32 v{vF+4}, v{vF+4}, v{vF+4}")
    a(f"buffer_store_short v{vF+4}, v{vT2}, {srd(rOUT)}, 0 offen")
    lab("L_fin")
    if STAMP:
        stamp(3)
        a("s_waitcnt lgkmcnt(0)")
        a(f"s_lshl_b32 s{sT0}, s2, 3")
        a(f"s_add_u32 s{sT0}, s{sT0}, s{sW}")
        a(f"s_lshl_b32 s{sT0}, s{sT0}, 4")
        a(f"s_add_u32 s{sT0}, s{sT0}, {WS_DBG}")
        a(f"v_lshlrev_b32 v{vP}, 22, v{vL}")
        a(f"v_add_u32 v{vP}, s{sT0}, v{vP}")
        for k in range(4): a(f"v_mov_b32 v{vP+4+k}, s{sSt+2*k}")
        a(f"buffer_store_dwordx4 {v4(vP+4)}, v{vP}, {srd(rWS)}, 0 offen")
    lab("L_end")
    a("s_endpgm")
    body = "\n".join(g.o)
    txt = HEADER + f"; @launch grid=(256,1,1) block=(512,1,1) lds={LDS}\n"
    txt += f""".amdgcn_target "amdgcn-amd-amdhsa--gfx950"
.text
.globl {KNAME}
.p2align 8
.type {KNAME},@function
{body}
.section .rodata,"a"
.p2align 6
.amdhsa_kernel {KNAME}
  .amdhsa_next_free_vgpr 256
  .amdhsa_next_free_sgpr 102
  .amdhsa_accum_offset 256
  .amdhsa_group_segment_fixed_size 0
  .amdhsa_kernarg_size 96
  .amdhsa_user_sgpr_count 2
  .amdhsa_user_sgpr_kernarg_segment_ptr 1
  .amdhsa_system_sgpr_workgroup_id_x 1
  .amdhsa_float_denorm_mode_32 3
.end_amdhsa_kernel
"""
    return txt

if __name__ == "__main__":
    out = sys.argv[1]
    opts = eval(sys.argv[2]) if len(sys.argv) > 2 else {}
    open(out, "w").write(gen(opts))
```

```python
import sys, struct

KNAME = "recurrent_scan__mha_block_cached__swiglu_ffn__decode_kernel"
def f32(x): return "0x%08x" % struct.unpack("<I", struct.pack("<f", x))[0]
HEADER = open("recurrent_scan__mha_block_cached__swiglu_ffn__decode.s.ref").read().split("; Override launch geometry")[0]
LOG2E = 1.4426950408889634

def gen(opts):
    o = []
    def a(s): o.append("  " + s)
    def lab(s): o.append(s + ":")
    def c(s): o.append("  ; " + s)
    KVF = opts.get("kvflags", "nt")
    WQF = opts.get("wqflags", "")
    FFF = opts.get("ffnflags", "")
    STAMP = opts.get("stamp", False)
    S2 = opts.get("S2", 4)
    K1 = opts.get("k1", 8)
    ROT = opts.get("rot", False)
    S = 8 + S2
    sX, sKp, sVp, sWQp, sWOp, sWGp, sWUp = 4, 6, 8, 10, 12, 16, 18
    sWDp, sOUTp, sDBGp, sWSp = 20, 22, 24, 26
    rK, rV, rWQ, rWS, rDBG, rOUT = 28, 32, 36, 40, 44, 48
    sW, sXc, sKk, sH1, sJ1, sBase2, sPart, sMl, sPh = 52, 53, 54, 55, 56, 57, 58, 59, 60
    sRot = 61
    sT, sN0, sN1, sN2, sN3 = 63, 64, 65, 66, 67
    sCC, sAA = 68, 70
    sT0, sT1, sT2, sT3 = 72, 73, 74, 75
    sP, sCons, sCid, sOnes, sTm = 76, 77, 78, 79, 80
    sC4k, sSpin = 81, 83
    sSt = 84
    def srd(r): return f"s[{r}:{r+3}]"
    def sp(r): return f"s[{r}:{r+1}]"
    vL, vG, vC, vKo, vYo, vL22, vFlo, vM, vLs = 0, 1, 2, 3, 4, 5, 6, 7, 8
    vT0, vT1, vT2 = 9, 10, 11
    vQ, vMask, vA0, vA1, vO = 12, 16, 20, 24, 28
    vP = 32
    vC16, vLo, vIdx, vL8, vFl, vXo, vFo, vL4 = 48, 49, 50, 51, 52, 53, 54, 55
    vQ1 = 56
    vKr, vVr = 64, 128
    vF = 192
    def v4(r): return f"v[{r}:{r+3}]"
    def v2(r): return f"v[{r}:{r+1}]"
    def a4(r): return f"a[{r}:{r+3}]"
    XN, GU, QP, FP, CF, CY, OP, MLS = 0, 2048, 18432, 22528, 23040, 24064, 25600, 27648
    PHOFF = 2560
    LDS = 30720
    WS_PART, WS_ML, WS_Q1, WS_CNT, WS_Y, WS_F, WS_DBG = 0, 0x40000, 0x50000, 0x60000, 1 << 20, 2 << 20, 3 << 20
    WS_SIZE = 4 << 20
    FULL = "row_mask:0xf bank_mask:0xf"
    KVB = 256 << 20

    def rnd_bf16(dst, src):
        a(f"v_cvt_pk_bf16_f32 v{dst}, v{src}, v{src}")
        a(f"v_lshlrev_b32 v{dst}, 16, v{dst}")
    def rowred(v, op="add"):
        for n in (8, 4, 2, 1):
            a("s_nop 1")
            a(f"v_{op}_f32_dpp v{v}, v{v}, v{v} row_ror:{n} {FULL}")
    def swapadd(v, t, which):
        a(f"v_mov_b32 v{t}, v{v}")
        a("s_nop 1")
        a(f"v_permlane{which}_swap_b32 v{t}, v{v}")
        a("s_nop 1")
        a(f"v_add_f32 v{v}, v{v}, v{t}")
    def vecmat(mkA, n, B, acc, first_zero, wait=None, post=None):
        A_ = lambda i: vA0 if i % 2 == 0 else vA1
        mkA(0, A_(0))
        for i in range(n):
            if i < n - 1: mkA(i + 1, A_(i + 1))
            else: a("s_nop 1")
            if wait: wait(i)
            cc = "0" if (first_zero and i == 0) else v4(acc)
            a(f"v_mfma_f32_16x16x32_bf16 {v4(acc)}, {v4(A_(i))}, {B(i)}, {cc}")
            if post: post(i)
    def reduce345(r):
        a("s_nop 1")
        for k in range(4):
            a(f"v_add_f32_dpp v{r+k}, v{r+k}, v{r+k} row_ror:8 {FULL}")
        a("s_nop 1")
        a(f"v_permlane16_swap_b32 v{r}, v{r+1}")
        a(f"v_permlane16_swap_b32 v{r+2}, v{r+3}")
        a("s_nop 1")
        a(f"v_add_f32 v{r}, v{r}, v{r+1}")
        a(f"v_add_f32 v{r+2}, v{r+2}, v{r+3}")
        a("s_nop 1")
        a(f"v_permlane32_swap_b32 v{r}, v{r+2}")
        a("s_nop 1")
        a(f"v_add_f32 v{r}, v{r}, v{r+2}")
    def silu(dst, src):
        a(f"v_mul_f32 v{dst}, {f32(-LOG2E)}, v{src}")
        a(f"v_exp_f32 v{dst}, v{dst}")
        a("s_nop 0")
        a(f"v_add_f32 v{dst}, 1.0, v{dst}")
        a(f"v_rcp_f32 v{dst}, v{dst}")
        a("s_nop 0")
        a(f"v_mul_f32 v{dst}, v{src}, v{dst}")
        rnd_bf16(dst, dst)
    def maxchain(t, r0, n):
        a(f"v_max3_u32 v{t}, v{r0}, v{r0+1}, v{r0+2}")
        r = 3
        while r + 1 < n:
            a(f"v_max3_u32 v{t}, v{r0+r}, v{r0+r+1}, v{t}"); r += 2
        if r < n: a(f"v_max_u32 v{t}, v{r0+r}, v{t}")
    def poll(name, loads, t, r0, n, first_wait=True):
        lab(name)
        if first_wait: a("s_waitcnt vmcnt(0)")
        lab(name + "_chk")
        maxchain(t, r0, n)
        a(f"v_cmp_eq_u32 vcc, -1, v{t}")
        a("s_nop 4")
        a(f"s_cbranch_vccz {name}_done")
        a(f"s_sub_u32 s{sSpin}, s{sSpin}, 1")
        a(f"s_cbranch_scc1 {name}_done")
        a("s_mov_b64 exec, vcc")
        loads()
        a("s_waitcnt vmcnt(0)")
        a(f"s_branch {name}_chk")
        lab(name + "_done")
        a("s_mov_b64 exec, -1")
    def stamp(k):
        if STAMP: a(f"s_memrealtime s[{sSt+2*k}:{sSt+2*k+1}]")
    sN = [sN0, sN1, sN2, sN3]
    def kvload(ring, r, i):
        a(f"buffer_load_dwordx4 {v4(ring+4*i)}, v{vKo}, {srd(r)}, s{sN[i//4]} offen offset:{(i%4)*1024} {KVF}")
    def setN():
        for j in range(1, 4): a(f"s_add_u32 s{sN[j]}, s{sN0}, {4096*j}")

    lab(KNAME)
    a("s_cmp_ge_u32 s2, 256")
    a("s_cbranch_scc1 L_end")
    a("s_load_dwordx16 s[4:19], s[0:1], 0")
    a("s_load_dwordx8 s[20:27], s[0:1], 64")
    stamp(0)
    a(f"v_lshrrev_b32 v{vT0}, 6, v0")
    a(f"v_lshlrev_b32 v{vFlo}, 8, v0")
    a(f"v_and_b32 v{vL}, 63, v0")
    a(f"v_readfirstlane_b32 s{sW}, v{vT0}")
    a(f"v_lshrrev_b32 v{vG}, 4, v{vL}")
    a(f"v_and_b32 v{vC}, 15, v{vL}")
    a(f"s_and_b32 s{sXc}, s2, 7")
    a(f"s_lshr_b32 s{sKk}, s2, 3")
    a(f"s_lshl_b32 s{sH1}, s{sXc}, 2")
    a(f"s_and_b32 s{sT0}, s{sKk}, 3")
    a(f"s_or_b32 s{sH1}, s{sH1}, s{sT0}")
    a(f"s_lshr_b32 s{sJ1}, s{sKk}, 2")
    vxo, vxp, vwq = vP + 10, vP + 11, vP + 12
    a(f"v_lshlrev_b32 v{vxo}, 5, v{vL}")
    a(f"v_lshrrev_b32 v{vT0}, 5, v{vL}")
    a(f"v_and_b32 v{vT1}, 31, v{vL}")
    a(f"v_lshlrev_b32 v{vT1}, 3, v{vT1}")
    a(f"v_lshl_add_u32 v{vxp}, v{vT0}, 10, v{vT1}")
    a(f"s_lshl_b32 s{sT0}, s{sW}, 8")
    a(f"v_add_u32 v{vxp}, s{sT0}, v{vxp}")
    a(f"v_lshlrev_b32 v{vC16}, 4, v{vC}")
    a(f"v_lshl_add_u32 v{vwq}, v{vG}, 18, v{vC16}")
    a(f"s_lshl_b32 s{sT0}, s{sW}, 20")
    a(f"s_lshl_b32 s{sT1}, s{sH1}, 8")
    a(f"s_add_u32 s{sT0}, s{sT0}, s{sT1}")
    a(f"v_add_u32 v{vwq}, s{sT0}, v{vwq}")
    a(f"v_lshlrev_b32 v{vKo}, 4, v{vL}")
    a(f"s_lshl_b32 s{sN0}, s{sJ1}, 5")
    a(f"s_add_u32 s{sN0}, s{sN0}, s{sW}")
    a(f"s_lshl_b32 s{sN0}, s{sN0}, 14")
    a(f"s_lshl_b32 s{sT0}, s{sH1}, 22")
    a(f"s_add_u32 s{sN0}, s{sN0}, s{sT0}")
    setN()
    if ROT:
        a(f"s_and_b32 s{sRot}, s{sJ1}, 3")
        a(f"s_lshl_b32 s{sRot}, s{sRot}, 16")
    for r, n in ((rWQ, 4 << 20), (rK, KVB), (rV, KVB)):
        a(f"s_mov_b32 s{r+2}, {n}")
        a(f"s_mov_b32 s{r+3}, 0x20000")
    a("s_waitcnt lgkmcnt(0)")
    a(f"global_load_dwordx4 {v4(vP)}, v{vxo}, {sp(sX)}")
    a(f"global_load_dwordx4 {v4(vP+4)}, v{vxo}, {sp(sX)} offset:16")
    a(f"global_load_dwordx2 {v2(vP+8)}, v{vxp}, {sp(sX)}")
    a(f"s_mov_b32 s{rWQ}, s{sWQp}")
    a(f"s_mov_b32 s{rWQ+1}, s{sWQp+1}")
    def wqload(i):
        if ROT:
            a(f"s_add_u32 s{sT0}, s{sRot}, {i*8192}")
            a(f"s_and_b32 s{sT0}, s{sT0}, 0x3ffff")
        else:
            a(f"s_mov_b32 s{sT0}, {i*8192}")
        a(f"buffer_load_dwordx4 {a4(4*i)}, v{vwq}, {srd(rWQ)}, s{sT0} offen {WQF}")
    a(f"s_mov_b32 s{rK}, s{sKp}")
    a(f"s_mov_b32 s{rK+1}, s{sKp+1}")
    a(f"s_mov_b32 s{rV}, s{sVp}")
    a(f"s_mov_b32 s{rV+1}, s{sVp+1}")
    for i in range(16): wqload(i)
    for i in range(K1): kvload(vKr, rK, i)
    for r, p, n in ((rWS, sWSp, WS_SIZE), (rDBG, sDBGp, 256), (rOUT, sOUTp, 2048)):
        a(f"s_mov_b32 s{r}, s{p}")
        a(f"s_mov_b32 s{r+1}, s{p+1}")
        a(f"s_mov_b32 s{r+2}, {n}")
        a(f"s_mov_b32 s{r+3}, 0x20000")
    a(f"s_mov_b32 s{sCC}, 0xcccccccc"); a(f"s_mov_b32 s{sCC+1}, 0xcccccccc")
    a(f"s_mov_b32 s{sAA}, 0xaaaaaaaa"); a(f"s_mov_b32 s{sAA+1}, 0xaaaaaaaa")
    a(f"s_mov_b32 s{sOnes}, 0x3f803f80")
    a(f"s_mov_b32 s{sSpin}, 0x80000")
    a(f"s_movk_i32 s{sC4k}, 4096")
    a(f"s_mov_b32 s{sPh}, 0")
    a(f"s_min_u32 s{sT0}, s{sKk}, 27")
    a(f"s_mul_i32 s{sP}, s{sXc}, 28")
    a(f"s_add_u32 s{sP}, s{sP}, s{sT0}")
    a(f"s_lshl_b32 s{sCid}, s{sXc}, 2")
    a(f"s_add_u32 s{sCid}, s{sCid}, s{sKk}")
    a(f"s_sub_u32 s{sCid}, s{sCid}, 28")
    a(f"s_cmp_ge_u32 s{sKk}, 28")
    a(f"s_cselect_b32 s{sCons}, 1, 0")
    a(f"s_add_u32 s{sBase2}, s{sKk}, 32")
    a(f"s_lshl_b32 s{sBase2}, s{sBase2}, 22")
    a(f"s_lshl_b32 s{sT0}, s{sH1}, 3")
    a(f"s_add_u32 s{sT0}, s{sT0}, s{sJ1}")
    a(f"s_lshl_b32 s{sPart}, s{sT0}, 9")
    a(f"s_lshl_b32 s{sMl}, s{sT0}, 3")
    a(f"s_add_u32 s{sMl}, s{sMl}, {WS_ML}")
    a(f"v_lshlrev_b32 v{vL22}, 22, v{vL}")
    a(f"v_lshlrev_b32 v{vL8}, 3, v{vL}")
    a(f"v_lshlrev_b32 v{vL4}, 2, v{vL}")
    a(f"v_add_u32 v{vFlo}, s2, v{vFlo}")
    a(f"v_and_b32 v{vT0}, 1, v{vG}")
    a(f"v_lshlrev_b32 v{vT0}, 4, v{vT0}")
    a(f"v_lshl_add_u32 v{vLo}, v{vC}, 5, v{vT0}")
    a(f"v_lshrrev_b32 v{vT0}, 1, v{vG}")
    a(f"v_lshlrev_b32 v{vT0}, 4, v{vT0}")
    a(f"v_lshrrev_b32 v{vT1}, 2, v{vC}")
    a(f"s_lshl_b32 s{sT0}, s{sW}, 2")
    a(f"v_add3_u32 v{vT0}, v{vT0}, v{vT1}, s{sT0}")
    a(f"v_and_b32 v{vT1}, 0x7f, v{vLo}")
    a(f"v_lshl_add_u32 v{vYo}, v{vT0}, 15, v{vT1}")
    a(f"s_lshl_b32 s{sT0}, s2, 7")
    a(f"s_add_u32 s{sT0}, s{sT0}, {WS_Y}")
    a(f"v_add_u32 v{vYo}, s{sT0}, v{vYo}")
    a(f"s_movk_i32 s{sT0}, 28672")
    a(f"v_mad_u32_u24 v{vFo}, v{vT0}, s{sT0}, v{vT1}")
    a(f"s_lshl_b32 s{sT0}, s{sP}, 7")
    a(f"s_add_u32 s{sT0}, s{sT0}, {WS_F}")
    a(f"v_add_u32 v{vFo}, s{sT0}, v{vFo}")
    a(f"v_and_b32 v{vXo}, 7, v{vL}")
    a(f"v_lshl_add_u32 v{vXo}, v{vXo}, 2, v{vG}")
    a(f"s_lshl_b32 s{sT0}, s{sCid}, 6")
    a(f"v_lshl_add_u32 v{vXo}, v{vXo}, 1, s{sT0}")
    a(f"v_and_b32 v{vT0}, 1, v{vC}")
    a(f"v_lshlrev_b32 v{vT0}, 4, v{vT0}")
    a(f"v_mov_b32 v{vT1}, 0xffff")
    a(f"v_lshlrev_b32 v{vT0}, v{vT0}, v{vT1}")
    a(f"v_bfe_u32 v{vT1}, v{vC}, 1, 2")
    for r in range(4):
        a(f"v_cmp_eq_u32 vcc, {r}, v{vT1}")
        a("s_nop 1")
        a(f"v_cndmask_b32 v{vMask+r}, 0, v{vT0}, vcc")
    vSel, vXn = vF, vF + 8
    a(f"v_mov_b32 v{vT0}, 0x0c0c0c0c")
    a(f"s_mov_b32 s{sT0}, 0x01000100")
    a(f"s_mov_b32 s{sT1}, 0x03020302")
    for r in range(4):
        a(f"v_bfi_b32 v{vSel+r}, v{vMask+r}, s{sT0}, v{vT0}")
        a(f"v_bfi_b32 v{vSel+4+r}, v{vMask+r}, s{sT1}, v{vT0}")
    vxa = vP + 13
    a(f"v_lshrrev_b32 v{vxa}, 3, v{vC}")
    a(f"v_lshlrev_b32 v{vxa}, 10, v{vxa}")
    a(f"v_lshl_add_u32 v{vxa}, v{vG}, 6, v{vxa}")
    a(f"s_lshl_b32 s{sT0}, s{sW}, 8")
    a(f"v_add_u32 v{vxa}, s{sT0}, v{vxa}")
    c("LayerNorm")
    a(f"s_waitcnt vmcnt({16+K1})")
    stamp(1)
    vs, vmn, vacc0, vacc1, vt, vu = vA0, vA0 + 1, vA0 + 2, vA0 + 3, vA1, vA1 + 1
    a(f"v_dot2_f32_bf16 v{vs}, v{vP}, s{sOnes}, 0")
    for r in range(1, 8):
        a(f"v_dot2_f32_bf16 v{vs}, v{vP+r}, s{sOnes}, v{vs}")
    a("s_nop 1")
    rowred(vs)
    swapadd(vs, vt, 16)
    a(f"v_mul_f32 v{vmn}, {f32(1/512)}, v{vs}")
    a(f"v_mov_b32 v{vacc0}, 0")
    a(f"v_mov_b32 v{vacc1}, 0")
    for r in range(8):
        a(f"v_lshlrev_b32 v{vt}, 16, v{vP+r}")
        a(f"v_and_b32 v{vu}, 0xffff0000, v{vP+r}")
        a(f"v_sub_f32 v{vt}, v{vt}, v{vmn}")
        a(f"v_sub_f32 v{vu}, v{vu}, v{vmn}")
        a(f"v_fmac_f32 v{vacc0}, v{vt}, v{vt}")
        a(f"v_fmac_f32 v{vacc1}, v{vu}, v{vu}")
    a(f"v_add_f32 v{vs}, v{vacc0}, v{vacc1}")
    rowred(vs)
    swapadd(vs, vt, 16)
    a(f"v_mul_f32 v{vs}, {f32(1/512)}, v{vs}")
    rnd_bf16(vs, vs)
    a(f"v_add_f32 v{vs}, {f32(1e-5)}, v{vs}")
    rnd_bf16(vs, vs)
    a(f"v_sqrt_f32 v{vs}, v{vs}")
    rnd_bf16(vmn, vmn)
    rnd_bf16(vs, vs)
    a(f"v_rcp_f32 v{vs}, v{vs}")
    for r in (8, 9):
        a(f"v_lshlrev_b32 v{vt}, 16, v{vP+r}")
        a(f"v_and_b32 v{vu}, 0xffff0000, v{vP+r}")
        a(f"v_sub_f32 v{vt}, v{vt}, v{vmn}")
        a(f"v_sub_f32 v{vu}, v{vu}, v{vmn}")
        a(f"v_cvt_pk_bf16_f32 v{vu}, v{vt}, v{vu}")
        a(f"v_lshlrev_b32 v{vt}, 16, v{vu}")
        a(f"v_and_b32 v{vu}, 0xffff0000, v{vu}")
        a(f"v_mul_f32 v{vt}, v{vt}, v{vs}")
        a(f"v_mul_f32 v{vu}, v{vu}, v{vs}")
        a(f"v_cvt_pk_bf16_f32 v{vP+r}, v{vt}, v{vu}")
    a(f"ds_write_b64 v{vxp}, {v2(vP+8)} offset:{XN}")
    a("s_waitcnt lgkmcnt(0)")
    for t in range(4):
        if ROT:
            a(f"s_lshr_b32 s{sT0}, s{sRot}, 12")
            a(f"s_add_u32 s{sT0}, s{sT0}, {16*t}")
            a(f"s_and_b32 s{sT0}, s{sT0}, 63")
            a(f"v_add_u32 v{vt}, s{sT0}, v{vxa}")
            a(f"ds_read_b128 {v4(vXn+4*t)}, v{vt} offset:{XN}")
        else:
            a(f"ds_read_b128 {v4(vXn+4*t)}, v{vxa} offset:{XN+16*t}")
    for i in range(16, 32): wqload(i)
    a("s_waitcnt lgkmcnt(0)")
    c("q projection")
    def mkAq(base):
        def f(i, A):
            ii = base + i
            for r in range(4):
                a(f"v_perm_b32 v{A+r}, v{vXn+ii//2}, v{vXn+ii//2}, v{vSel+4*(ii%2)+r}")
        return f
    a(f"s_waitcnt vmcnt({K1+16})")
    vecmat(mkAq(0), 16, lambda i: a4(4 * i), vO, True)
    for i in range(K1, 16): kvload(vKr, rK, i)
    a(f"s_waitcnt vmcnt({16-K1})")
    vecmat(mkAq(16), 16, lambda i: a4(64 + 4 * i), vO, False)
    a(f"v_lshrrev_b32 v{vT0}, 1, v{vG}")
    a(f"v_lshl_add_u32 v{vT0}, v{vT0}, 9, v{vLo}")
    a(f"s_lshl_b32 s{sT0}, s{sW}, 10")
    a(f"v_add_u32 v{vT0}, s{sT0}, v{vT0}")
    a(f"v_mov_b32 v{vM}, {f32(-3.0e38)}")
    a(f"v_mov_b32 v{vLs}, 0")
    a(f"s_mov_b32 s{sT}, 0")
    a(f"s_lshl_b32 s{sT0}, s{sW}, 9")
    a(f"v_add_u32 v{vLo}, s{sT0}, v{vLo}")
    a(f"ds_write_b128 v{vT0}, {v4(vO)} offset:{QP}")
    a("s_waitcnt lgkmcnt(0)")
    a("s_barrier")
    for w in range(4):
        a(f"ds_read_b64 {v2(vP+2*w)}, v{vL8} offset:{QP+1024*w}")
    for r in range(4): a(f"v_mov_b32 v{vO+r}, 0")
    a("s_waitcnt lgkmcnt(0)")
    for w in range(1, 4):
        a(f"v_add_f32 v{vP}, v{vP}, v{vP+2*w}")
        a(f"v_add_f32 v{vP+1}, v{vP+1}, v{vP+2*w+1}")
    a(f"v_cvt_pk_bf16_f32 v{vP}, v{vP}, v{vP+1}")
    for r in range(4):
        a(f"ds_bpermute_b32 v{vQ+r}, v{vC16}, v{vP} offset:{4*r}")
    stamp(2)
    for i in range(16): kvload(vVr, rV, i)
    a(f"s_add_u32 s{sN0}, s{sN0}, 0x10000")
    setN()
    a("s_waitcnt lgkmcnt(0)")
    c("main loop")
    a(".p2align 6")
    lab("L_loop")
    for i in range(16):
        a("s_waitcnt vmcnt(31)")
        k = vKr + 4 * i
        a(f"v_dot2_f32_bf16 v{vP+i}, v{k}, v{vQ}, 0")
        for r in range(1, 4):
            a(f"v_dot2_f32_bf16 v{vP+i}, v{k+r}, v{vQ+r}, v{vP+i}")
        kvload(vKr, rK, i)
    for i in range(8):
        a(f"v_add_f32_dpp v{vP+i}, v{vP+i}, v{vP+i} row_ror:8 row_mask:0xf bank_mask:0x3")
    for i in range(8):
        a(f"v_add_f32_dpp v{vP+i}, v{vP+i+8}, v{vP+i+8} row_ror:8 row_mask:0xf bank_mask:0xc")
    for i in range(4):
        a(f"v_add_f32_dpp v{vP+i}, v{vP+i}, v{vP+i} row_shl:4 row_mask:0xf bank_mask:0x5")
    for i in range(4):
        a(f"v_add_f32_dpp v{vP+i}, v{vP+i+4}, v{vP+i+4} row_shr:4 row_mask:0xf bank_mask:0xa")
    a("s_nop 0")
    for i in range(4):
        a(f"v_add_f32_dpp v{vP+i}, v{vP+i}, v{vP+i} quad_perm:[2,3,0,1] {FULL}")
    a(f"v_cndmask_b32 v{vP}, v{vP}, v{vP+2}, {sp(sCC)}")
    a(f"v_cndmask_b32 v{vP+1}, v{vP+1}, v{vP+3}, {sp(sCC)}")
    a("s_nop 0")
    a(f"v_add_f32_dpp v{vP}, v{vP}, v{vP} quad_perm:[1,0,3,2] {FULL}")
    a(f"v_add_f32_dpp v{vP+1}, v{vP+1}, v{vP+1} quad_perm:[1,0,3,2] {FULL}")
    a(f"v_cndmask_b32 v{vP}, v{vP}, v{vP+1}, {sp(sAA)}")
    rnd_bf16(vP, vP)
    a(f"v_mul_f32 v{vP}, {f32(128 ** -0.5)}, v{vP}")
    rnd_bf16(vP, vP)
    tm = vP + 1
    a("s_nop 1")
    a(f"v_max_f32_dpp v{tm}, v{vP}, v{vP} row_ror:8 {FULL}")
    for n in (4, 2, 1):
        a("s_nop 1")
        a(f"v_max_f32_dpp v{tm}, v{tm}, v{tm} row_ror:{n} {FULL}")
    a("s_nop 1")
    a(f"v_max_f32_dpp v{tm}, v{tm}, v{tm} row_bcast:15 row_mask:0xa bank_mask:0xf")
    a("s_nop 1")
    a(f"v_max_f32_dpp v{tm}, v{tm}, v{tm} row_bcast:31 row_mask:0xc bank_mask:0xf")
    a("s_nop 0")
    a(f"v_readlane_b32 s{sTm}, v{tm}, 63")
    a("s_nop 1")
    a(f"v_max_f32 v{tm}, s{sTm}, v{vM}")
    al, pp = vP + 2, vP + 3
    a(f"v_sub_f32 v{al}, v{vM}, v{tm}")
    a(f"v_sub_f32 v{pp}, v{vP}, v{tm}")
    a(f"v_mul_f32 v{al}, {f32(LOG2E)}, v{al}")
    a(f"v_mul_f32 v{pp}, {f32(LOG2E)}, v{pp}")
    a(f"v_exp_f32 v{al}, v{al}")
    a(f"v_exp_f32 v{pp}, v{pp}")
    a(f"v_mov_b32 v{vM}, v{tm}")
    a(f"v_fma_f32 v{vLs}, v{vLs}, v{al}, v{pp}")
    a(f"v_cvt_pk_bf16_f32 v{pp}, v{pp}, v{pp}")
    for r in range(4): a(f"v_mul_f32 v{vO+r}, v{vO+r}, v{al}")
    def mkAp(i, A):
        for r in range(4):
            a(f"v_and_b32_dpp v{A+r}, v{pp}, v{vMask+r} row_newbcast:{i} {FULL}")
    vecmat(mkAp, 16, lambda i: v4(vVr + 4 * i), vO, False, lambda i: a("s_waitcnt vmcnt(31)"), lambda i: kvload(vVr, rV, i))
    a(f"s_add_u32 s{sT}, s{sT}, 1")
    a(f"s_cmp_ge_u32 s{sN0}, {KVB}")
    a("s_cbranch_scc1 L_tail")
    a(f"s_cmp_ge_u32 s{sT}, {S-1}")
    a("s_cbranch_scc1 L_dyn")
    a(f"s_add_u32 s{sN0}, s{sN0}, 0x10000")
    setN()
    assert S - 2 >= 9
    hooks = [(1, "L_h1"), (2, "L_h2"), (5, "L_hfl"), (6, "L_hck"), (7, "L_h7"), (8, "L_comb"), (S - 2, "L_req")]
    for t, l in hooks:
        a(f"s_cmp_eq_u32 s{sT}, {t}")
        a(f"s_cbranch_scc1 {l}")
    a("s_branch L_loop")
    lab("L_dyn")
    a(f"v_readfirstlane_b32 s{sT0}, v{vIdx}")
    a("s_nop 3")
    a(f"s_add_u32 s{sT0}, s{sT0}, {32*S2}")
    a(f"s_lshl_b32 s{sN0}, s{sT0}, 14")
    a(f"s_add_u32 s{sN0}, s{sN0}, s{sBase2}")
    a(f"s_cmp_ge_u32 s{sT0}, 256")
    a(f"s_cselect_b32 s{sN0}, {KVB}, s{sN0}")
    setN()
    a(f"s_cmp_ge_u32 s{sN0}, {KVB}")
    a("s_cbranch_scc1 L_loop")
    lab("L_req")
    a(f"s_lshl_b32 s{sT0}, s{sKk}, 8")
    a(f"s_add_u32 s{sT0}, s{sT0}, {WS_CNT}")
    a(f"v_mov_b32 v{vIdx}, 1")
    a(f"buffer_atomic_add v{vIdx}, v{vL22}, {srd(rWS)}, s{sT0} offen sc0 sc1")
    a("s_branch L_loop")
    lab("L_h7")
    a(f"s_mul_i32 s{sN0}, s{sXc}, {4*S2}")
    a(f"s_add_u32 s{sN0}, s{sN0}, s{sW}")
    a(f"s_lshl_b32 s{sN0}, s{sN0}, 14")
    a(f"s_add_u32 s{sN0}, s{sN0}, s{sBase2}")
    setN()
    a("s_branch L_loop")
    Gt, Ut, Dn, FB = vF, vF + 8, vF + 16, vF + 24
    lab("L_h1")
    c("clears, q1 publication, wo + FFN loads")
    for r in range(4): a(f"v_mov_b32 v{vP+r}, -1")
    a(f"buffer_store_dwordx4 {v4(vP)}, v{vYo}, {srd(rWS)}, 0 offen sc1")
    a(f"s_cmp_lg_u32 s{sW}, 0")
    a("s_cbranch_scc1 L_h1b")
    a(f"buffer_store_dwordx2 {v2(vP)}, v{vL8}, {srd(rWS)}, s{sPart} offen sc1")
    a(f"buffer_store_dwordx2 {v2(vP)}, v{vL22}, {srd(rWS)}, s{sMl} offen sc1")
    a(f"s_add_u32 s{sT0}, s2, 256")
    a(f"s_lshl_b32 s{sT1}, s{sT0}, 9")
    a(f"s_lshl_b32 s{sT0}, s{sT0}, 3")
    a(f"s_add_u32 s{sT0}, s{sT0}, {WS_ML}")
    a(f"buffer_store_dwordx2 {v2(vP)}, v{vL8}, {srd(rWS)}, s{sT1} offen sc1")
    a(f"buffer_store_dwordx2 {v2(vP)}, v{vL22}, {srd(rWS)}, s{sT0} offen sc1")
    a(f"s_cmp_lg_u32 s{sJ1}, 0")
    a("s_cbranch_scc1 L_h1b")
    for w in range(4):
        a(f"ds_read_b64 {v2(vP+4+2*w)}, v{vL8} offset:{QP+1024*w+512}")
    a(f"s_lshl_b32 s{sT0}, s{sH1}, 8")
    a(f"s_add_u32 s{sT1}, s{sT0}, {WS_CNT}")
    a(f"s_add_u32 s{sT0}, s{sT0}, {WS_Q1}")
    a(f"v_mov_b32 v{vP+12}, 0")
    a(f"buffer_store_dword v{vP+12}, v{vL22}, {srd(rWS)}, s{sT1} offen sc1")
    a("s_waitcnt lgkmcnt(0)")
    for w in range(1, 4):
        a(f"v_add_f32 v{vP+4}, v{vP+4}, v{vP+4+2*w}")
        a(f"v_add_f32 v{vP+5}, v{vP+5}, v{vP+5+2*w}")
    a(f"v_cvt_pk_bf16_f32 v{vP+4}, v{vP+4}, v{vP+5}")
    a(f"buffer_store_dword v{vP+4}, v{vL4}, {srd(rWS)}, s{sT0} offen sc1")
    lab("L_h1b")
    a(f"v_lshl_add_u32 v{vT0}, v{vG}, 12, v{vC16}")
    a(f"s_lshl_b32 s{sT0}, s2, 14")
    a(f"s_lshl_b32 s{sT1}, s{sW}, 8")
    a(f"s_add_u32 s{sT0}, s{sT0}, s{sT1}")
    a(f"v_add_u32 v{vT0}, s{sT0}, v{vT0}")
    for i in range(4):
        a(f"global_load_dwordx4 {a4(4*i)}, v{vT0}, {sp(sWOp)} offset:{1024*i} {KVF}")
    a(f"s_cmp_eq_u32 s{sCons}, 1")
    a("s_cbranch_scc1 L_loop")
    a(f"buffer_store_dwordx4 {v4(vP)}, v{vFo}, {srd(rWS)}, 0 offen sc1")
    a(f"s_movk_i32 s{sT0}, 3584")
    a(f"v_mul_u32_u24 v{vT0}, s{sT0}, v{vL}")
    a(f"s_mul_i32 s{sT0}, s{sW}, {128*3584}")
    a(f"s_lshl_b32 s{sT1}, s{sP}, 4")
    a(f"s_add_u32 s{sT0}, s{sT0}, s{sT1}")
    a(f"v_add_u32 v{vT0}, s{sT0}, v{vT0}")
    a(f"v_add_u32 v{vT1}, {64*3584}, v{vT0}")
    a(f"global_load_dwordx4 {v4(Gt)}, v{vT0}, {sp(sWGp)} {FFF}")
    a(f"global_load_dwordx4 {v4(Ut)}, v{vT0}, {sp(sWUp)} {FFF}")
    a(f"global_load_dwordx4 {v4(Gt+4)}, v{vT1}, {sp(sWGp)} {FFF}")
    a(f"global_load_dwordx4 {v4(Ut+4)}, v{vT1}, {sp(sWUp)} {FFF}")
    a(f"v_lshl_add_u32 v{vT0}, v{vG}, 10, v{vC16}")
    a(f"s_lshl_b32 s{sT0}, s{sP}, 13")
    a(f"s_lshl_b32 s{sT1}, s{sW}, 8")
    a(f"s_add_u32 s{sT0}, s{sT0}, s{sT1}")
    a(f"s_add_u32 s{sT0}, s{sT0}, 2048")
    a(f"v_add_u32 v{vT0}, s{sT0}, v{vT0}")
    a(f"global_load_dwordx4 {v4(Dn)}, v{vT0}, {sp(sWDp)} offset:-2048 {KVF}")
    a(f"global_load_dwordx4 {v4(Dn+4)}, v{vT0}, {sp(sWDp)} offset:2048 {KVF}")
    a("s_branch L_loop")
    lab("L_h2")
    a(f"s_cmp_eq_u32 s{sCons}, 1")
    a("s_cbranch_scc1 L_h2b")
    c("FFN stage 1")
    a(f"s_lshl_b32 s{sT0}, s{sW}, 12")
    a(f"v_lshl_add_u32 v{vT0}, v{vL}, 5, s{sT0}")
    a(f"ds_write_b128 v{vT0}, {v4(Gt)} offset:{GU}")
    a(f"ds_write_b128 v{vT0}, {v4(Ut)} offset:{GU+16}")
    a(f"ds_write_b128 v{vT0}, {v4(Gt+4)} offset:{GU+2048}")
    a(f"ds_write_b128 v{vT0}, {v4(Ut+4)} offset:{GU+2048+16}")
    a(f"v_lshrrev_b32 v{vT0}, 2, v{vC}")
    a(f"v_lshlrev_b32 v{vT0}, 5, v{vT0}")
    a(f"v_lshl_add_u32 v{vT0}, v{vG}, 8, v{vT0}")
    a(f"v_and_b32 v{vT1}, 3, v{vC}")
    a(f"v_lshl_add_u32 v{vT0}, v{vT1}, 3, v{vT0}")
    a(f"v_add_u32 v{vT0}, s{sT0}, v{vT0}")
    a(f"v_and_b32 v{vT1}, 1, v{vC}")
    a(f"v_lshlrev_b32 v{vT1}, 10, v{vT1}")
    a(f"v_lshl_add_u32 v{vT1}, v{vG}, 4, v{vT1}")
    a(f"s_lshl_b32 s{sT0}, s{sW}, 8")
    a(f"v_add_u32 v{vT1}, s{sT0}, v{vT1}")
    a("s_waitcnt lgkmcnt(0)")
    for t in range(4):
        a(f"ds_read_b128 {v4(vP+4*t)}, v{vT1} offset:{XN+64*t}")
        a(f"ds_read_b64_tr_b16 {v2(FB+4*t)}, v{vT0} offset:{GU+1024*t}")
        a(f"ds_read_b64_tr_b16 {v2(FB+4*t+2)}, v{vT0} offset:{GU+1024*t+128}")
    a("s_waitcnt lgkmcnt(0)")
    for t in range(4):
        a(f"v_mfma_f32_16x16x32_bf16 {v4(vA0)}, {v4(vP+4*t)}, {v4(FB+4*t)}, {'0' if t == 0 else v4(vA0)}")
    a(f"s_lshl_b32 s{sT0}, s{sW}, 7")
    a(f"v_lshl_add_u32 v{vT0}, v{vC}, 2, s{sT0}")
    a("s_nop 7")
    a(f"ds_write_b32 v{vT0}, v{vA0} offset:{FP}")
    a(f"ds_write_b32 v{vT0}, v{vA0+1} offset:{FP+64}")
    a("s_waitcnt lgkmcnt(0)")
    lab("L_h2b")
    a("s_barrier")
    a(f"v_mov_b32 v{vT0}, 1")
    a(f"buffer_store_byte v{vT0}, v{vFlo}, {srd(rDBG)}, 0 offen sc1")
    a(f"s_cmp_eq_u32 s{sCons}, 1")
    a("s_cbranch_scc1 L_loop")
    c("FFN stage 2")
    a(f"v_and_b32 v{vT1}, 0x7f, v{vL4}")
    for w in range(4):
        a(f"ds_read_b32 v{vP+w}, v{vT1} offset:{FP+128*w}")
    a(f"v_lshrrev_b32 v{vT0}, 3, v{vC}")
    a(f"v_lshlrev_b32 v{vT0}, 6, v{vT0}")
    a(f"v_lshl_add_u32 v{vT0}, v{vG}, 2, v{vT0}")
    a("s_waitcnt lgkmcnt(0)")
    for w in range(1, 4):
        a(f"v_add_f32 v{vP}, v{vP}, v{vP+w}")
    rnd_bf16(vP, vP)
    silu(vP + 1, vP)
    a(f"v_mul_f32_dpp v{vP+1}, v{vP}, v{vP+1} row_ror:8 {FULL}")
    a(f"v_cvt_pk_bf16_f32 v{vP+1}, v{vP+1}, v{vP+1}")
    a(f"ds_bpermute_b32 v{vP+2}, v{vT0}, v{vP+1}")
    a(f"ds_bpermute_b32 v{vP+3}, v{vT0}, v{vP+1} offset:16")
    a("s_waitcnt lgkmcnt(0)")
    for r in range(4): a(f"v_and_b32 v{vA0+r}, v{vP+2}, v{vMask+r}")
    for r in range(4): a(f"v_and_b32 v{vA1+r}, v{vP+3}, v{vMask+r}")
    a("s_nop 1")
    a(f"v_mfma_f32_16x16x32_bf16 {v4(FB)}, {v4(vA0)}, {v4(Dn)}, 0")
    a(f"v_mfma_f32_16x16x32_bf16 {v4(FB)}, {v4(vA1)}, {v4(Dn+4)}, {v4(FB)}")
    a("s_nop 7")
    for r in range(4): a(f"v_min_u32 v{FB+r}, -2, v{FB+r}")
    a(f"buffer_store_dwordx4 {v4(FB)}, v{vFo}, {srd(rWS)}, 0 offen sc1")
    a("s_branch L_loop")
    lab("L_hfl")
    a(f"buffer_load_dword v{vFl}, v{vL4}, {srd(rDBG)}, 0 offen sc1")
    a("s_branch L_loop")
    lab("L_hck")
    a(f"v_cmp_ne_u32 vcc, 0x01010101, v{vFl}")
    a("s_nop 4")
    a("s_cbranch_vccz L_hok")
    a(f"s_sub_u32 s{sSpin}, s{sSpin}, 1")
    a("s_cbranch_scc1 L_hok")
    a("s_sleep 4")
    a(f"buffer_load_dword v{vFl}, v{vL4}, {srd(rDBG)}, 0 offen sc1")
    a("s_waitcnt vmcnt(0)")
    a("s_branch L_hck")
    lab("L_hok")
    a(f"s_lshl_b32 s{sT0}, s{sKk}, 8")
    a(f"s_add_u32 s{sT0}, s{sT0}, {WS_Q1}")
    a(f"buffer_load_dwordx4 {v4(vQ1)}, v{vC16}, {srd(rWS)}, s{sT0} offen sc1")
    a(f"s_cmp_eq_u32 s{sCons}, 0")
    a("s_cbranch_scc1 L_loop")
    a(f"s_mul_i32 s{sT0}, s{sCid}, 28672")
    a(f"s_mul_i32 s{sT1}, s{sW}, 7168")
    a(f"s_add_u32 s{sT0}, s{sT0}, s{sT1}")
    a(f"s_add_u32 s{sT0}, s{sT0}, {WS_F}")
    a(f"v_lshl_add_u32 v{vFo}, v{vL}, 4, s{sT0}")
    def f_loads():
        for i in range(7):
            a(f"buffer_load_dwordx4 {v4(vF+4*i)}, v{vFo}, {srd(rWS)}, {'0' if i < 4 else 's%d' % sC4k} offen offset:{(i%4)*1024} sc1")
    f_loads()
    a(f"global_load_ushort v{vT2}, v{vXo}, {sp(sX)}")
    a("s_branch L_loop")
    lab("L_tail")
    stamp(4)
    lab("L_comb")
    rowred(vLs)
    swapadd(vLs, vT0, 16)
    swapadd(vLs, vT0, 32)
    a(f"s_lshl_b32 s{sT0}, s{sW}, 3")
    a(f"s_add_u32 s{sT0}, s{sT0}, s{sPh}")
    a(f"v_mov_b32 v{vP+3}, s{sT0}")
    a(f"v_add_u32 v{vP+2}, s{sPh}, v{vLo}")
    a(f"v_mov_b32 v{vP}, v{vM}")
    a(f"v_mov_b32 v{vP+1}, v{vLs}")
    a(f"ds_write_b128 v{vP+2}, {v4(vO)} offset:{OP}")
    a(f"ds_write_b64 v{vP+3}, {v2(vP)} offset:{MLS}")
    a(f"v_and_b32 v{vP+4}, 24, v{vL8}")
    a(f"v_add_u32 v{vP+4}, s{sPh}, v{vP+4}")
    a(f"v_add_u32 v{vP+5}, s{sPh}, v{vL8}")
    a("s_waitcnt lgkmcnt(0)")
    a("s_barrier")
    a(f"s_cmp_lg_u32 s{sW}, 0")
    a("s_cbranch_scc1 L_comb_done")
    a(f"ds_read_b64 {v2(vP)}, v{vP+4} offset:{MLS}")
    for w in range(4):
        a(f"ds_read_b64 {v2(vP+8+2*w)}, v{vP+5} offset:{OP+512*w}")
    a(f"s_waitcnt lgkmcnt({0 if STAMP else 4})")
    mx, e = vP + 2, vP + 3
    a(f"v_max_f32_dpp v{mx}, v{vP}, v{vP} quad_perm:[2,3,0,1] {FULL}")
    a("s_nop 1")
    a(f"v_max_f32_dpp v{mx}, v{mx}, v{mx} quad_perm:[1,0,3,2] {FULL}")
    a(f"v_sub_f32 v{vP+4}, v{vP}, v{mx}")
    a(f"v_mul_f32 v{vP+4}, {f32(LOG2E)}, v{vP+4}")
    a(f"v_exp_f32 v{vP+4}, v{vP+4}")
    a("s_nop 0")
    a(f"v_mul_f32 v{e}, v{vP+4}, v{vP+1}")
    a("s_waitcnt lgkmcnt(0)")
    o0, o1 = vP + 6, vP + 7
    a(f"v_mul_f32_dpp v{o0}, v{vP+4}, v{vP+8} quad_perm:[0,0,0,0] {FULL}")
    a(f"v_mul_f32_dpp v{o1}, v{vP+4}, v{vP+9} quad_perm:[0,0,0,0] {FULL}")
    a(f"v_add_f32_dpp v{e}, v{e}, v{e} quad_perm:[2,3,0,1] {FULL}")
    for w in range(1, 4):
        a(f"v_fmac_f32_dpp v{o0}, v{vP+4}, v{vP+8+2*w} quad_perm:[{w},{w},{w},{w}] {FULL}")
        a(f"v_fmac_f32_dpp v{o1}, v{vP+4}, v{vP+9+2*w} quad_perm:[{w},{w},{w},{w}] {FULL}")
    a(f"v_add_f32_dpp v{e}, v{e}, v{e} quad_perm:[1,0,3,2] {FULL}")
    a(f"v_min_u32 v{o0}, -2, v{o0}")
    a(f"v_min_u32 v{o1}, -2, v{o1}")
    a(f"buffer_store_dwordx2 {v2(o0)}, v{vL8}, {srd(rWS)}, s{sPart} offen sc1")
    a(f"v_min_u32 v{mx}, -2, v{mx}")
    a(f"v_min_u32 v{e}, -2, v{e}")
    a(f"buffer_store_dwordx2 {v2(mx)}, v{vL22}, {srd(rWS)}, s{sMl} offen sc1")
    lab("L_comb_done")
    a(f"s_cmp_lg_u32 s{sPh}, 0")
    a("s_cbranch_scc1 L_gather")
    c("switch to batch 1")
    stamp(3)
    a(f"s_movk_i32 s{sPh}, {PHOFF}")
    a(f"s_add_u32 s{sT0}, s2, 256")
    a(f"s_lshl_b32 s{sPart}, s{sT0}, 9")
    a(f"s_lshl_b32 s{sMl}, s{sT0}, 3")
    a(f"s_add_u32 s{sMl}, s{sMl}, {WS_ML}")
    a(f"v_mov_b32 v{vM}, {f32(-3.0e38)}")
    a(f"v_mov_b32 v{vLs}, 0")
    for r in range(4): a(f"v_mov_b32 v{vO+r}, 0")
    for r in range(4): a(f"v_mov_b32 v{vQ+r}, v{vQ1+r}")
    a(f"v_lshrrev_b32 v{vT0}, 3, v{vC}")
    a(f"v_and_b32 v{vT1}, 7, v{vC}")
    a(f"v_lshl_add_u32 v{vT0}, v{vT0}, 8, v{vT1}")
    a(f"s_lshl_b32 s{sT0}, s{sKk}, 3")
    a(f"v_add_u32 v{vT0}, s{sT0}, v{vT0}")
    a(f"v_lshlrev_b32 v{vQ1+1}, 3, v{vT0}")
    a(f"v_add_u32 v{vQ1+1}, {WS_ML}, v{vQ1+1}")
    a(f"v_lshlrev_b32 v{vQ1}, 9, v{vT0}")
    a(f"v_lshl_add_u32 v{vQ1}, v{vG}, 4, v{vQ1}")
    a(f"s_lshl_b32 s{sT0}, s{sXc}, 6")
    a(f"v_add_u32 v{vQ1}, s{sT0}, v{vQ1}")
    a(f"s_lshl_b32 s{sT0}, s{sCid}, 15")
    a(f"s_lshl_b32 s{sT1}, s{sW}, 13")
    a(f"s_add_u32 s{sT0}, s{sT0}, s{sT1}")
    a(f"s_add_u32 s{sT0}, s{sT0}, {WS_Y}")
    a(f"v_lshl_add_u32 v{vQ1+2}, v{vL}, 4, s{sT0}")
    a(f"s_lshl_b32 s{sT0}, s{sW}, 8")
    a(f"v_add_u32 v{vFl}, s{sT0}, v{vL4}")
    a(f"s_cmp_eq_u32 s{sCons}, 0")
    a("s_cbranch_scc1 L_loop")
    poll("L_pf", f_loads, vP, vF, 28, first_wait=False)
    for i in range(1, 7):
        for r in range(4):
            a(f"v_add_f32 v{vF+r}, v{vF+r}, v{vF+4*i+r}")
    reduce345(vF)
    a(f"ds_write_b32 v{vFl}, v{vF} offset:{CF}")
    a(f"v_lshlrev_b32 v{vT2}, 16, v{vT2}")
    a(f"v_bfe_u32 v{vF+3}, v{vL}, 3, 1")
    a(f"v_lshl_add_u32 v{vXo}, v{vF+3}, 20, v{vXo}")
    a("s_branch L_loop")
    lab("L_gather")
    stamp(5)
    G = vP + 8
    def g_loads():
        a(f"buffer_load_dwordx4 {v4(G)}, v{vQ1}, {srd(rWS)}, 0 offen sc1")
        a(f"buffer_load_dwordx2 {v2(G+4)}, v{vQ1+1}, {srd(rWS)}, 0 offen sc1")
    g_loads()
    poll("L_pg", g_loads, vP, G, 6)
    def red8(v, op, src=None):
        for n, p in enumerate(("quad_perm:[1,0,3,2]", "quad_perm:[2,3,0,1]", "row_half_mirror")):
            s_ = src if (src is not None and n == 0) else v
            a("s_nop 1")
            a(f"v_{op}_f32_dpp v{v}, v{s_}, v{s_} {p} {FULL}")
    red8(vP, "max", G + 4)
    a(f"v_sub_f32 v{vP}, v{G+4}, v{vP}")
    a(f"v_mul_f32 v{vP}, {f32(LOG2E)}, v{vP}")
    a(f"v_exp_f32 v{vP}, v{vP}")
    a("s_nop 0")
    a(f"v_mul_f32 v{G+4}, v{vP}, v{G+5}")
    for r in range(4): a(f"v_mul_f32 v{G+r}, v{vP}, v{G+r}")
    for p in ("quad_perm:[1,0,3,2]", "quad_perm:[2,3,0,1]", "row_half_mirror"):
        for r in (4, 0, 1, 2, 3):
            a(f"v_add_f32_dpp v{G+r}, v{G+r}, v{G+r} {p} {FULL}")
    a(f"v_rcp_f32 v{G+4}, v{G+4}")
    a("s_nop 0")
    for r in range(4): a(f"v_mul_f32 v{G+r}, v{G+r}, v{G+4}")
    for r in range(4): a(f"v_cvt_pk_bf16_f32 v{G+r}, v{G+r}, v{G+r}")
    def mkAo(i, A):
        for r in range(4):
            a(f"v_and_b32 v{A+r}, v{G+i}, v{vMask+r}")
    vecmat(mkAo, 4, lambda i: a4(4 * i), vO, True)
    a("s_nop 7")
    for r in range(4): a(f"v_min_u32 v{vO+r}, -2, v{vO+r}")
    a(f"buffer_store_dwordx4 {v4(vO)}, v{vYo}, {srd(rWS)}, 0 offen sc1")
    stamp(6)
    a(f"s_cmp_eq_u32 s{sCons}, 0")
    a("s_cbranch_scc1 L_fin")
    Y = vF + 32
    def y_loads():
        for i in range(8):
            a(f"buffer_load_dwordx4 {v4(Y+4*i)}, v{vQ1+2}, {srd(rWS)}, {'0' if i < 4 else 's%d' % sC4k} offen offset:{(i%4)*1024} sc1")
    y_loads()
    vg = vF + 2
    a(f"s_cmp_lg_u32 s{sW}, 0")
    a("s_cbranch_scc1 L_py")
    for w in range(4):
        a(f"ds_read_b32 v{vF+4+w}, v{vFl} offset:{CF+256*w}")
    a("s_waitcnt lgkmcnt(0)")
    for w in range(1, 4):
        a(f"v_add_f32 v{vF+4}, v{vF+4}, v{vF+4+w}")
    rnd_bf16(vF + 4, vF + 4)
    silu(vg, vF + 4)
    poll("L_py", y_loads, vP, Y, 32)
    for st in (16, 8, 4):
        for r in range(st):
            a(f"v_add_f32 v{Y+r}, v{Y+r}, v{Y+st+r}")
    reduce345(Y)
    a(f"ds_write_b32 v{vFl}, v{Y} offset:{CY}")
    a("s_waitcnt lgkmcnt(0)")
    a("s_barrier")
    a(f"s_cmp_lg_u32 s{sW}, 0")
    a("s_cbranch_scc1 L_fin")
    for w in range(4):
        a(f"ds_read_b32 v{vF+4+w}, v{vFl} offset:{CY+256*w}")
    a("s_waitcnt lgkmcnt(0)")
    for w in range(1, 4):
        a(f"v_add_f32 v{vF+4}, v{vF+4}, v{vF+4+w}")
    rnd_bf16(vF + 4, vF + 4)
    a(f"v_mul_f32 v{vF+4}, v{vF+4}, v{vg}")
    rnd_bf16(vF + 4, vF + 4)
    a(f"v_add_f32 v{vF+4}, v{vF+4}, v{vT2}")
    a(f"v_cvt_pk_bf16_f32 v{vF+4}, v{vF+4}, v{vF+4}")
    a(f"buffer_store_short v{vF+4}, v{vXo}, {srd(rOUT)}, 0 offen")
    lab("L_fin")
    if STAMP:
        stamp(7)
        a("s_waitcnt lgkmcnt(0)")
        a(f"s_lshl_b32 s{sT0}, s2, 2")
        a(f"s_add_u32 s{sT0}, s{sT0}, s{sW}")
        a(f"s_lshl_b32 s{sT0}, s{sT0}, 5")
        a(f"s_add_u32 s{sT0}, s{sT0}, {WS_DBG}")
        for k in range(8): a(f"v_mov_b32 v{vP+4+k}, s{sSt+2*k}")
        a(f"v_lshl_or_b32 v{vP+4}, v{vP+4}, 8, s{sT}")
        a(f"buffer_store_dwordx4 {v4(vP+4)}, v{vL22}, {srd(rWS)}, s{sT0} offen")
        a(f"buffer_store_dwordx4 {v4(vP+8)}, v{vL22}, {srd(rWS)}, s{sT0} offen offset:16")
    lab("L_end")
    a("s_endpgm")
    body = "\n".join(o)
    txt = HEADER + f"; @launch grid=(256,1,1) block=(256,1,1) lds={LDS}\n"
    txt += f""".amdgcn_target "amdgcn-amd-amdhsa--gfx950"
.text
.globl {KNAME}
.p2align 8
.type {KNAME},@function
{body}
.section .rodata,"a"
.p2align 6
.amdhsa_kernel {KNAME}
  .amdhsa_next_free_vgpr 384
  .amdhsa_next_free_sgpr 102
  .amdhsa_accum_offset 256
  .amdhsa_group_segment_fixed_size 0
  .amdhsa_kernarg_size 96
  .amdhsa_user_sgpr_count 2
  .amdhsa_user_sgpr_kernarg_segment_ptr 1
  .amdhsa_system_sgpr_workgroup_id_x 1
  .amdhsa_float_denorm_mode_32 3
.end_amdhsa_kernel
"""
    return txt

if __name__ == "__main__":
    out = sys.argv[1]
    opts = eval(sys.argv[2]) if len(sys.argv) > 2 else {}
    open(out, "w").write(gen(opts))
```

```python
import sys, struct

KNAME = "recurrent_scan__mha_block_cached__swiglu_ffn__decode_kernel"
def f32(x): return "0x%08x" % struct.unpack("<I", struct.pack("<f", x))[0]
HEADER = open("recurrent_scan__mha_block_cached__swiglu_ffn__decode.s.ref").read().split("; Override launch geometry")[0]
LOG2E = 1.4426950408889634

def gen(opts):
    o = []
    def a(s): o.append("  " + s)
    def lab(s): o.append(s + ":")
    def c(s): o.append("  ; " + s)
    KVF = opts.get("kvflags", "nt")
    WQF = opts.get("wqflags", "")
    FFF = opts.get("ffnflags", "")
    STAMP = opts.get("stamp", False)
    S2 = opts.get("S2", 4)
    K1 = opts.get("k1", 8)
    ROT = opts.get("rot", True)
    D = opts.get("D", 16)
    PRO = opts.get("pro", "a")
    S = 8 + S2
    sX, sKp, sVp, sWQp, sWOp, sWGp, sWUp = 4, 6, 8, 10, 12, 16, 18
    sWDp, sOUTp, sDBGp, sWSp = 20, 22, 24, 26
    rK, rV, rWQ, rWS, rDBG, rOUT = 28, 32, 36, 40, 44, 48
    sW, sXc, sKk, sH1, sJ1, sBase2, sPart, sMl, sPh = 52, 53, 54, 55, 56, 57, 58, 59, 60
    sRot, sFirst2 = 61, 62
    sT, sN0, sN1, sN2, sN3 = 63, 64, 65, 66, 67
    sCC, sAA = 68, 70
    sT0, sT1, sT2, sT3 = 72, 73, 74, 75
    sP, sCons, sCid, sOnes, sTm = 76, 77, 78, 79, 80
    sC4k, sSpin = 81, 83
    sSt = 84
    def srd(r): return f"s[{r}:{r+3}]"
    def sp(r): return f"s[{r}:{r+1}]"
    vL, vG, vC, vKo, vYo, vL22, vFlo, vM, vLs = 0, 1, 2, 3, 4, 5, 6, 7, 8
    vT0, vT1, vT2 = 9, 10, 11
    vQ, vMask, vA0, vA1, vO = 12, 16, 20, 24, 28
    vP = 32
    vC16, vLo, vIdx, vL8, vFl, vXo, vFo, vL4 = 48, 49, 50, 51, 52, 53, 54, 55
    vQ1 = 56
    vKr, vVr = 64, 128
    vF = 192
    def v4(r): return f"v[{r}:{r+3}]"
    def v2(r): return f"v[{r}:{r+1}]"
    def a4(r): return f"a[{r}:{r+3}]"
    XN, GU, QP, FP, CF, CY, OP, MLS = 0, 2048, 18432, 22528, 23040, 24064, 25600, 27648
    PHOFF = 2560
    LDS = 30720
    WS_PART, WS_ML, WS_Q1, WS_CNT, WS_Y, WS_F, WS_DBG = 0, 0x40000, 0x50000, 0x60000, 1 << 20, 2 << 20, 3 << 20
    WS_SIZE = 4 << 20
    FULL = "row_mask:0xf bank_mask:0xf"
    KVB = 256 << 20

    def rnd_bf16(dst, src):
        a(f"v_cvt_pk_bf16_f32 v{dst}, v{src}, v{src}")
        a(f"v_lshlrev_b32 v{dst}, 16, v{dst}")
    def rowred(v, op="add"):
        for n in (8, 4, 2, 1):
            a("s_nop 1")
            a(f"v_{op}_f32_dpp v{v}, v{v}, v{v} row_ror:{n} {FULL}")
    def swapadd(v, t, which):
        a(f"v_mov_b32 v{t}, v{v}")
        a("s_nop 1")
        a(f"v_permlane{which}_swap_b32 v{t}, v{v}")
        a("s_nop 1")
        a(f"v_add_f32 v{v}, v{v}, v{t}")
    def vecmat(mkA, n, B, acc, first_zero, wait=None, post=None):
        A_ = lambda i: vA0 if i % 2 == 0 else vA1
        mkA(0, A_(0))
        for i in range(n):
            if i < n - 1: mkA(i + 1, A_(i + 1))
            else: a("s_nop 1")
            if wait: wait(i)
            cc = "0" if (first_zero and i == 0) else v4(acc)
            a(f"v_mfma_f32_16x16x32_bf16 {v4(acc)}, {v4(A_(i))}, {B(i)}, {cc}")
            if post: post(i)
    def reduce345(r):
        a("s_nop 1")
        for k in range(4):
            a(f"v_add_f32_dpp v{r+k}, v{r+k}, v{r+k} row_ror:8 {FULL}")
        a("s_nop 1")
        a(f"v_permlane16_swap_b32 v{r}, v{r+1}")
        a(f"v_permlane16_swap_b32 v{r+2}, v{r+3}")
        a("s_nop 1")
        a(f"v_add_f32 v{r}, v{r}, v{r+1}")
        a(f"v_add_f32 v{r+2}, v{r+2}, v{r+3}")
        a("s_nop 1")
        a(f"v_permlane32_swap_b32 v{r}, v{r+2}")
        a("s_nop 1")
        a(f"v_add_f32 v{r}, v{r}, v{r+2}")
    def silu(dst, src):
        a(f"v_mul_f32 v{dst}, {f32(-LOG2E)}, v{src}")
        a(f"v_exp_f32 v{dst}, v{dst}")
        a("s_nop 0")
        a(f"v_add_f32 v{dst}, 1.0, v{dst}")
        a(f"v_rcp_f32 v{dst}, v{dst}")
        a("s_nop 0")
        a(f"v_mul_f32 v{dst}, v{src}, v{dst}")
        rnd_bf16(dst, dst)
    def maxchain(t, r0, n):
        a(f"v_max3_u32 v{t}, v{r0}, v{r0+1}, v{r0+2}")
        r = 3
        while r + 1 < n:
            a(f"v_max3_u32 v{t}, v{r0+r}, v{r0+r+1}, v{t}"); r += 2
        if r < n: a(f"v_max_u32 v{t}, v{r0+r}, v{t}")
    def poll(name, loads, t, r0, n, first_wait=True):
        lab(name)
        if first_wait: a("s_waitcnt vmcnt(0)")
        lab(name + "_chk")
        maxchain(t, r0, n)
        a(f"v_cmp_eq_u32 vcc, -1, v{t}")
        a("s_nop 4")
        a(f"s_cbranch_vccz {name}_done")
        a(f"s_sub_u32 s{sSpin}, s{sSpin}, 1")
        a(f"s_cbranch_scc1 {name}_done")
        a("s_mov_b64 exec, vcc")
        loads()
        a("s_waitcnt vmcnt(0)")
        a(f"s_branch {name}_chk")
        lab(name + "_done")
        a("s_mov_b64 exec, -1")
    def stamp(k):
        if STAMP: a(f"s_memrealtime s[{sSt+2*k}:{sSt+2*k+1}]")
    sN = [sN0, sN1, sN2, sN3]
    def kvload(ring, r, i):
        a(f"buffer_load_dwordx4 {v4(ring+4*i)}, v{vKo}, {srd(r)}, s{sN[i//4]} offen offset:{(i%4)*1024} {KVF}")
    def setN():
        for j in range(1, 4): a(f"s_add_u32 s{sN[j]}, s{sN0}, {4096*j}")

    lab(KNAME)
    a("s_cmp_ge_u32 s2, 256")
    a("s_cbranch_scc1 L_end")
    a("s_load_dwordx16 s[4:19], s[0:1], 0")
    a("s_load_dwordx8 s[20:27], s[0:1], 64")
    stamp(0)
    a(f"v_lshrrev_b32 v{vT0}, 6, v0")
    a(f"v_lshlrev_b32 v{vFlo}, 8, v0")
    a(f"v_and_b32 v{vL}, 63, v0")
    a(f"v_readfirstlane_b32 s{sW}, v{vT0}")
    a(f"v_lshrrev_b32 v{vG}, 4, v{vL}")
    a(f"v_and_b32 v{vC}, 15, v{vL}")
    a(f"s_and_b32 s{sXc}, s2, 7")
    a(f"s_lshr_b32 s{sKk}, s2, 3")
    a(f"s_lshl_b32 s{sH1}, s{sXc}, 2")
    a(f"s_and_b32 s{sT0}, s{sKk}, 3")
    a(f"s_or_b32 s{sH1}, s{sH1}, s{sT0}")
    a(f"s_lshr_b32 s{sJ1}, s{sKk}, 2")
    vxo, vxp, vwq = vP + 10, vP + 11, vP + 12
    a(f"v_lshlrev_b32 v{vxo}, 5, v{vL}")
    a(f"v_lshrrev_b32 v{vT0}, 5, v{vL}")
    a(f"v_and_b32 v{vT1}, 31, v{vL}")
    a(f"v_lshlrev_b32 v{vT1}, 3, v{vT1}")
    a(f"v_lshl_add_u32 v{vxp}, v{vT0}, 10, v{vT1}")
    a(f"s_lshl_b32 s{sT0}, s{sW}, 8")
    a(f"v_add_u32 v{vxp}, s{sT0}, v{vxp}")
    a(f"v_lshlrev_b32 v{vC16}, 4, v{vC}")
    a(f"v_lshl_add_u32 v{vwq}, v{vG}, 18, v{vC16}")
    a(f"s_lshl_b32 s{sT0}, s{sW}, 20")
    a(f"s_lshl_b32 s{sT1}, s{sH1}, 8")
    a(f"s_add_u32 s{sT0}, s{sT0}, s{sT1}")
    a(f"v_add_u32 v{vwq}, s{sT0}, v{vwq}")
    a(f"v_lshlrev_b32 v{vKo}, 4, v{vL}")
    a(f"s_lshl_b32 s{sN0}, s{sJ1}, 5")
    a(f"s_add_u32 s{sN0}, s{sN0}, s{sW}")
    a(f"s_lshl_b32 s{sN0}, s{sN0}, 14")
    a(f"s_lshl_b32 s{sT0}, s{sH1}, 22")
    a(f"s_add_u32 s{sN0}, s{sN0}, s{sT0}")
    setN()
    if ROT:
        a(f"s_and_b32 s{sRot}, s{sJ1}, 3")
        a(f"s_lshl_b32 s{sRot}, s{sRot}, 16")
    for r, n in ((rWQ, 4 << 20), (rK, KVB), (rV, KVB)):
        a(f"s_mov_b32 s{r+2}, {n}")
        a(f"s_mov_b32 s{r+3}, 0x20000")
    a("s_waitcnt lgkmcnt(0)")
    a(f"global_load_dwordx4 {v4(vP)}, v{vxo}, {sp(sX)}")
    a(f"global_load_dwordx4 {v4(vP+4)}, v{vxo}, {sp(sX)} offset:16")
    a(f"global_load_dwordx2 {v2(vP+8)}, v{vxp}, {sp(sX)}")
    a(f"s_mov_b32 s{rWQ}, s{sWQp}")
    a(f"s_mov_b32 s{rWQ+1}, s{sWQp+1}")
    def wqload(i):
        if ROT:
            a(f"s_add_u32 s{sT0}, s{sRot}, {i*8192}")
            a(f"s_and_b32 s{sT0}, s{sT0}, 0x3ffff")
        else:
            a(f"s_mov_b32 s{sT0}, {i*8192}")
        a(f"buffer_load_dwordx4 {a4(4*i)}, v{vwq}, {srd(rWQ)}, s{sT0} offen {WQF}")
    a(f"s_mov_b32 s{rK}, s{sKp}")
    a(f"s_mov_b32 s{rK+1}, s{sKp+1}")
    a(f"s_mov_b32 s{rV}, s{sVp}")
    a(f"s_mov_b32 s{rV+1}, s{sVp+1}")
    if PRO == "a":
        pre = [("q", i) for i in range(16)] + [("k", i) for i in range(K1)]
        mid = [("q", i) for i in range(16, 32)]
        post = [("k", i) for i in range(K1, 16)]
    elif PRO == "b":
        seq = []
        for i in range(16): seq += [("k", i), ("q", 2 * i), ("q", 2 * i + 1)]
        pre, mid, post = seq[:24], seq[24:], []
    elif PRO == "c":
        pre = [("k", i) for i in range(8)] + [("q", i) for i in range(16)]
        mid = [("q", i) for i in range(16, 32)]
        post = [("k", i) for i in range(8, 16)]
    elif PRO == "d":
        pre = [("q", i) for i in range(32)]
        mid = [("k", i) for i in range(16)]
        post = []
    def issue(lst):
        for kind, i in lst:
            if kind == "q": wqload(i)
            else: kvload(vKr, rK, i)
    def younger(seq, item): return len(seq) - 1 - seq.index(item)
    issue(pre)
    for r, p, n in ((rWS, sWSp, WS_SIZE), (rDBG, sDBGp, 256), (rOUT, sOUTp, 2048)):
        a(f"s_mov_b32 s{r}, s{p}")
        a(f"s_mov_b32 s{r+1}, s{p+1}")
        a(f"s_mov_b32 s{r+2}, {n}")
        a(f"s_mov_b32 s{r+3}, 0x20000")
    a(f"s_mov_b32 s{sCC}, 0xcccccccc"); a(f"s_mov_b32 s{sCC+1}, 0xcccccccc")
    a(f"s_mov_b32 s{sAA}, 0xaaaaaaaa"); a(f"s_mov_b32 s{sAA+1}, 0xaaaaaaaa")
    a(f"s_mov_b32 s{sOnes}, 0x3f803f80")
    a(f"s_mov_b32 s{sSpin}, 0x80000")
    a(f"s_movk_i32 s{sC4k}, 4096")
    a(f"s_mov_b32 s{sPh}, 0")
    a(f"s_min_u32 s{sT0}, s{sKk}, 27")
    a(f"s_mul_i32 s{sP}, s{sXc}, 28")
    a(f"s_add_u32 s{sP}, s{sP}, s{sT0}")
    a(f"s_lshl_b32 s{sCid}, s{sXc}, 2")
    a(f"s_add_u32 s{sCid}, s{sCid}, s{sKk}")
    a(f"s_sub_u32 s{sCid}, s{sCid}, 28")
    a(f"s_cmp_ge_u32 s{sKk}, 28")
    a(f"s_cselect_b32 s{sCons}, 1, 0")
    a(f"s_add_u32 s{sBase2}, s{sKk}, 32")
    a(f"s_lshl_b32 s{sBase2}, s{sBase2}, 22")
    a(f"s_mul_i32 s{sFirst2}, s{sXc}, {4*S2}")
    a(f"s_add_u32 s{sFirst2}, s{sFirst2}, s{sW}")
    a(f"s_lshl_b32 s{sFirst2}, s{sFirst2}, 14")
    a(f"s_add_u32 s{sFirst2}, s{sFirst2}, s{sBase2}")
    a(f"s_lshl_b32 s{sT3}, s{sKk}, 8")
    a(f"s_add_u32 s{sT3}, s{sT3}, {WS_CNT}")
    a(f"s_lshl_b32 s{sT0}, s{sH1}, 3")
    a(f"s_add_u32 s{sT0}, s{sT0}, s{sJ1}")
    a(f"s_lshl_b32 s{sPart}, s{sT0}, 9")
    a(f"s_lshl_b32 s{sMl}, s{sT0}, 3")
    a(f"s_add_u32 s{sMl}, s{sMl}, {WS_ML}")
    a(f"v_lshlrev_b32 v{vL22}, 22, v{vL}")
    a(f"v_lshlrev_b32 v{vL8}, 3, v{vL}")
    a(f"v_lshlrev_b32 v{vL4}, 2, v{vL}")
    a(f"v_add_u32 v{vFlo}, s2, v{vFlo}")
    a(f"v_and_b32 v{vT0}, 1, v{vG}")
    a(f"v_lshlrev_b32 v{vT0}, 4, v{vT0}")
    a(f"v_lshl_add_u32 v{vLo}, v{vC}, 5, v{vT0}")
    a(f"v_lshrrev_b32 v{vT0}, 1, v{vG}")
    a(f"v_lshlrev_b32 v{vT0}, 4, v{vT0}")
    a(f"v_lshrrev_b32 v{vT1}, 2, v{vC}")
    a(f"s_lshl_b32 s{sT0}, s{sW}, 2")
    a(f"v_add3_u32 v{vT0}, v{vT0}, v{vT1}, s{sT0}")
    a(f"v_and_b32 v{vT1}, 0x7f, v{vLo}")
    a(f"v_lshl_add_u32 v{vYo}, v{vT0}, 15, v{vT1}")
    a(f"s_lshl_b32 s{sT0}, s2, 7")
    a(f"s_add_u32 s{sT0}, s{sT0}, {WS_Y}")
    a(f"v_add_u32 v{vYo}, s{sT0}, v{vYo}")
    a(f"s_movk_i32 s{sT0}, 28672")
    a(f"v_mad_u32_u24 v{vFo}, v{vT0}, s{sT0}, v{vT1}")
    a(f"s_lshl_b32 s{sT0}, s{sP}, 7")
    a(f"s_add_u32 s{sT0}, s{sT0}, {WS_F}")
    a(f"v_add_u32 v{vFo}, s{sT0}, v{vFo}")
    a(f"v_and_b32 v{vXo}, 7, v{vL}")
    a(f"v_lshl_add_u32 v{vXo}, v{vXo}, 2, v{vG}")
    a(f"s_lshl_b32 s{sT0}, s{sCid}, 6")
    a(f"v_lshl_add_u32 v{vXo}, v{vXo}, 1, s{sT0}")
    a(f"v_and_b32 v{vT0}, 1, v{vC}")
    a(f"v_lshlrev_b32 v{vT0}, 4, v{vT0}")
    a(f"v_mov_b32 v{vT1}, 0xffff")
    a(f"v_lshlrev_b32 v{vT0}, v{vT0}, v{vT1}")
    a(f"v_bfe_u32 v{vT1}, v{vC}, 1, 2")
    for r in range(4):
        a(f"v_cmp_eq_u32 vcc, {r}, v{vT1}")
        a("s_nop 1")
        a(f"v_cndmask_b32 v{vMask+r}, 0, v{vT0}, vcc")
    vSel, vXn = vF, vF + 8
    a(f"v_mov_b32 v{vT0}, 0x0c0c0c0c")
    a(f"s_mov_b32 s{sT0}, 0x01000100")
    a(f"s_mov_b32 s{sT1}, 0x03020302")
    for r in range(4):
        a(f"v_bfi_b32 v{vSel+r}, v{vMask+r}, s{sT0}, v{vT0}")
        a(f"v_bfi_b32 v{vSel+4+r}, v{vMask+r}, s{sT1}, v{vT0}")
    vxa = vP + 13
    a(f"v_lshrrev_b32 v{vxa}, 3, v{vC}")
    a(f"v_lshlrev_b32 v{vxa}, 10, v{vxa}")
    a(f"v_lshl_add_u32 v{vxa}, v{vG}, 6, v{vxa}")
    a(f"s_lshl_b32 s{sT0}, s{sW}, 8")
    a(f"v_add_u32 v{vxa}, s{sT0}, v{vxa}")
    c("LayerNorm")
    a(f"s_waitcnt vmcnt({len(pre)})")
    stamp(1)
    vs, vmn, vacc0, vacc1, vt, vu = vA0, vA0 + 1, vA0 + 2, vA0 + 3, vA1, vA1 + 1
    a(f"v_dot2_f32_bf16 v{vs}, v{vP}, s{sOnes}, 0")
    for r in range(1, 8):
        a(f"v_dot2_f32_bf16 v{vs}, v{vP+r}, s{sOnes}, v{vs}")
    a("s_nop 1")
    rowred(vs)
    swapadd(vs, vt, 16)
    a(f"v_mul_f32 v{vmn}, {f32(1/512)}, v{vs}")
    a(f"v_mov_b32 v{vacc0}, 0")
    a(f"v_mov_b32 v{vacc1}, 0")
    for r in range(8):
        a(f"v_lshlrev_b32 v{vt}, 16, v{vP+r}")
        a(f"v_and_b32 v{vu}, 0xffff0000, v{vP+r}")
        a(f"v_sub_f32 v{vt}, v{vt}, v{vmn}")
        a(f"v_sub_f32 v{vu}, v{vu}, v{vmn}")
        a(f"v_fmac_f32 v{vacc0}, v{vt}, v{vt}")
        a(f"v_fmac_f32 v{vacc1}, v{vu}, v{vu}")
    a(f"v_add_f32 v{vs}, v{vacc0}, v{vacc1}")
    rowred(vs)
    swapadd(vs, vt, 16)
    a(f"v_mul_f32 v{vs}, {f32(1/512)}, v{vs}")
    rnd_bf16(vs, vs)
    a(f"v_add_f32 v{vs}, {f32(1e-5)}, v{vs}")
    rnd_bf16(vs, vs)
    a(f"v_sqrt_f32 v{vs}, v{vs}")
    rnd_bf16(vmn, vmn)
    rnd_bf16(vs, vs)
    a(f"v_rcp_f32 v{vs}, v{vs}")
    for r in (8, 9):
        a(f"v_lshlrev_b32 v{vt}, 16, v{vP+r}")
        a(f"v_and_b32 v{vu}, 0xffff0000, v{vP+r}")
        a(f"v_sub_f32 v{vt}, v{vt}, v{vmn}")
        a(f"v_sub_f32 v{vu}, v{vu}, v{vmn}")
        a(f"v_cvt_pk_bf16_f32 v{vu}, v{vt}, v{vu}")
        a(f"v_lshlrev_b32 v{vt}, 16, v{vu}")
        a(f"v_and_b32 v{vu}, 0xffff0000, v{vu}")
        a(f"v_mul_f32 v{vt}, v{vt}, v{vs}")
        a(f"v_mul_f32 v{vu}, v{vu}, v{vs}")
        a(f"v_cvt_pk_bf16_f32 v{vP+r}, v{vt}, v{vu}")
    a(f"ds_write_b64 v{vxp}, {v2(vP+8)} offset:{XN}")
    a("s_waitcnt lgkmcnt(0)")
    for t in range(4):
        if ROT:
            a(f"s_lshr_b32 s{sT0}, s{sRot}, 12")
            a(f"s_add_u32 s{sT0}, s{sT0}, {16*t}")
            a(f"s_and_b32 s{sT0}, s{sT0}, 63")
            a(f"v_add_u32 v{vt}, s{sT0}, v{vxa}")
            a(f"ds_read_b128 {v4(vXn+4*t)}, v{vt} offset:{XN}")
        else:
            a(f"ds_read_b128 {v4(vXn+4*t)}, v{vxa} offset:{XN+16*t}")
    issue(mid)
    a("s_waitcnt lgkmcnt(0)")
    c("q projection")
    def mkAq(base):
        def f(i, A):
            ii = base + i
            for r in range(4):
                a(f"v_perm_b32 v{A+r}, v{vXn+ii//2}, v{vXn+ii//2}, v{vSel+4*(ii%2)+r}")
        return f
    a(f"s_waitcnt vmcnt({younger(pre + mid, ('q', 15))})")
    vecmat(mkAq(0), 16, lambda i: a4(4 * i), vO, True)
    issue(post)
    VE = opts.get("ve", 0)
    for i in range(VE): kvload(vVr, rV, i)
    a(f"s_waitcnt vmcnt({younger(pre + mid + post, ('q', 31)) + VE})")
    vecmat(mkAq(16), 16, lambda i: a4(64 + 4 * i), vO, False)
    a(f"v_lshrrev_b32 v{vT0}, 1, v{vG}")
    a(f"v_lshl_add_u32 v{vT0}, v{vT0}, 9, v{vLo}")
    a(f"s_lshl_b32 s{sT0}, s{sW}, 10")
    a(f"v_add_u32 v{vT0}, s{sT0}, v{vT0}")
    a(f"v_mov_b32 v{vM}, {f32(-3.0e38)}")
    a(f"v_mov_b32 v{vLs}, 0")
    a(f"s_mov_b32 s{sT}, 0")
    a(f"s_lshl_b32 s{sT0}, s{sW}, 9")
    a(f"v_add_u32 v{vLo}, s{sT0}, v{vLo}")
    a(f"ds_write_b128 v{vT0}, {v4(vO)} offset:{QP}")
    a("s_waitcnt lgkmcnt(0)")
    a("s_barrier")
    for w in range(4):
        a(f"ds_read_b64 {v2(vP+2*w)}, v{vL8} offset:{QP+1024*w}")
    for r in range(4): a(f"v_mov_b32 v{vO+r}, 0")
    a("s_waitcnt lgkmcnt(0)")
    for w in range(1, 4):
        a(f"v_add_f32 v{vP}, v{vP}, v{vP+2*w}")
        a(f"v_add_f32 v{vP+1}, v{vP+1}, v{vP+2*w+1}")
    a(f"v_cvt_pk_bf16_f32 v{vP}, v{vP}, v{vP+1}")
    for r in range(4):
        a(f"ds_bpermute_b32 v{vQ+r}, v{vC16}, v{vP} offset:{4*r}")
    stamp(2)
    for i in range(VE, D): kvload(vVr, rV, i)
    a("s_waitcnt lgkmcnt(0)")
    def kdots(i):
        k = vKr + 4 * i
        a(f"v_dot2_f32_bf16 v{vP+i}, v{k}, v{vQ}, 0")
        for r in range(1, 4):
            a(f"v_dot2_f32_bf16 v{vP+i}, v{k+r}, v{vQ+r}, v{vP+i}")
    for i in range(16):
        if i % 4 == 0: a(f"s_waitcnt vmcnt({12-i+D})")
        kdots(i)
    a("s_branch L_tree")
    def step_pre(n):
        if n == 32 - 2 * D:
            a(f"s_cmp_lt_u32 s{sT}, {S-1}")
            a("s_cbranch_scc1 L_noreq")
            a(f"v_mov_b32 v{vIdx}, 1")
            a(f"buffer_atomic_add v{vIdx}, v{vL22}, {srd(rWS)}, s{sT3} offen sc0 sc1")
            lab("L_noreq")
    def step_issue(n):
        if n == 32 - D:
            a(f"v_readfirstlane_b32 s{sT0}, v{vIdx}")
            a(f"s_add_u32 s{sN0}, s{sN0}, 0x10000")
            a(f"s_cmp_eq_u32 s{sT}, 7")
            a(f"s_cselect_b32 s{sN0}, s{sFirst2}, s{sN0}")
            a(f"s_add_u32 s{sT0}, s{sT0}, {32*S2}")
            a(f"s_lshl_b32 s{sT1}, s{sT0}, 14")
            a(f"s_add_u32 s{sT1}, s{sT1}, s{sBase2}")
            a(f"s_cmp_ge_u32 s{sT0}, 256")
            a(f"s_cselect_b32 s{sT1}, {KVB}, s{sT1}")
            a(f"s_cmp_ge_u32 s{sT}, {S-1}")
            a(f"s_cselect_b32 s{sN0}, s{sT1}, s{sN0}")
            setN()
        m = (n + D) % 32
        if m < 16: kvload(vKr, rK, m)
        else: kvload(vVr, rV, m - 16)
    c("main loop")
    a(".p2align 6")
    lab("L_loop")
    for i in range(16):
        step_pre(i)
        a(f"s_waitcnt vmcnt({D-1})")
        kdots(i)
        step_issue(i)
    lab("L_tree")
    for i in range(8):
        a(f"v_add_f32_dpp v{vP+i}, v{vP+i}, v{vP+i} row_ror:8 row_mask:0xf bank_mask:0x3")
    for i in range(8):
        a(f"v_add_f32_dpp v{vP+i}, v{vP+i+8}, v{vP+i+8} row_ror:8 row_mask:0xf bank_mask:0xc")
    for i in range(4):
        a(f"v_add_f32_dpp v{vP+i}, v{vP+i}, v{vP+i} row_shl:4 row_mask:0xf bank_mask:0x5")
    for i in range(4):
        a(f"v_add_f32_dpp v{vP+i}, v{vP+i+4}, v{vP+i+4} row_shr:4 row_mask:0xf bank_mask:0xa")
    a("s_nop 0")
    for i in range(4):
        a(f"v_add_f32_dpp v{vP+i}, v{vP+i}, v{vP+i} quad_perm:[2,3,0,1] {FULL}")
    a(f"v_cndmask_b32 v{vP}, v{vP}, v{vP+2}, {sp(sCC)}")
    a(f"v_cndmask_b32 v{vP+1}, v{vP+1}, v{vP+3}, {sp(sCC)}")
    a("s_nop 0")
    a(f"v_add_f32_dpp v{vP}, v{vP}, v{vP} quad_perm:[1,0,3,2] {FULL}")
    a(f"v_add_f32_dpp v{vP+1}, v{vP+1}, v{vP+1} quad_perm:[1,0,3,2] {FULL}")
    a(f"v_cndmask_b32 v{vP}, v{vP}, v{vP+1}, {sp(sAA)}")
    rnd_bf16(vP, vP)
    a(f"v_mul_f32 v{vP}, {f32(128 ** -0.5)}, v{vP}")
    rnd_bf16(vP, vP)
    tm = vP + 1
    a("s_nop 1")
    a(f"v_max_f32_dpp v{tm}, v{vP}, v{vP} row_ror:8 {FULL}")
    for n in (4, 2, 1):
        a("s_nop 1")
        a(f"v_max_f32_dpp v{tm}, v{tm}, v{tm} row_ror:{n} {FULL}")
    a("s_nop 1")
    a(f"v_max_f32_dpp v{tm}, v{tm}, v{tm} row_bcast:15 row_mask:0xa bank_mask:0xf")
    a("s_nop 1")
    a(f"v_max_f32_dpp v{tm}, v{tm}, v{tm} row_bcast:31 row_mask:0xc bank_mask:0xf")
    a("s_nop 0")
    a(f"v_readlane_b32 s{sTm}, v{tm}, 63")
    a("s_nop 1")
    a(f"v_max_f32 v{tm}, s{sTm}, v{vM}")
    al, pp = vP + 2, vP + 3
    a(f"v_sub_f32 v{al}, v{vM}, v{tm}")
    a(f"v_sub_f32 v{pp}, v{vP}, v{tm}")
    a(f"v_mul_f32 v{al}, {f32(LOG2E)}, v{al}")
    a(f"v_mul_f32 v{pp}, {f32(LOG2E)}, v{pp}")
    a(f"v_exp_f32 v{al}, v{al}")
    a(f"v_exp_f32 v{pp}, v{pp}")
    a(f"v_mov_b32 v{vM}, v{tm}")
    a(f"v_fma_f32 v{vLs}, v{vLs}, v{al}, v{pp}")
    a(f"v_cvt_pk_bf16_f32 v{pp}, v{pp}, v{pp}")
    for r in range(4): a(f"v_mul_f32 v{vO+r}, v{vO+r}, v{al}")
    def mkAp(i, A):
        for r in range(4):
            a(f"v_and_b32_dpp v{A+r}, v{pp}, v{vMask+r} row_newbcast:{i} {FULL}")
    def vwait(i):
        step_pre(16 + i)
        a(f"s_waitcnt vmcnt({D-1})")
    vecmat(mkAp, 16, lambda i: v4(vVr + 4 * i), vO, False, vwait, lambda i: step_issue(16 + i))
    a(f"s_add_u32 s{sT}, s{sT}, 1")
    a(f"s_cmp_ge_u32 s{sN0}, {KVB}")
    a("s_cbranch_scc1 L_tail")
    a(f"s_cmp_gt_u32 s{sT}, 8")
    a("s_cbranch_scc1 L_loop")
    hooks = [(1, "L_h1"), (2, "L_h2"), (5, "L_hfl"), (6, "L_hck"), (8, "L_comb")]
    for t, l in hooks:
        a(f"s_cmp_eq_u32 s{sT}, {t}")
        a(f"s_cbranch_scc1 {l}")
    a("s_branch L_loop")
    Gt, Ut, Dn, FB = vF, vF + 8, vF + 16, vF + 24
    lab("L_h1")
    c("clears, q1 publication, wo + FFN loads")
    for r in range(4): a(f"v_mov_b32 v{vP+r}, -1")
    a(f"buffer_store_dwordx4 {v4(vP)}, v{vYo}, {srd(rWS)}, 0 offen sc1")
    a(f"s_cmp_lg_u32 s{sW}, 0")
    a("s_cbranch_scc1 L_h1b")
    a(f"buffer_store_dwordx2 {v2(vP)}, v{vL8}, {srd(rWS)}, s{sPart} offen sc1")
    a(f"buffer_store_dwordx2 {v2(vP)}, v{vL22}, {srd(rWS)}, s{sMl} offen sc1")
    a(f"s_add_u32 s{sT0}, s2, 256")
    a(f"s_lshl_b32 s{sT1}, s{sT0}, 9")
    a(f"s_lshl_b32 s{sT0}, s{sT0}, 3")
    a(f"s_add_u32 s{sT0}, s{sT0}, {WS_ML}")
    a(f"buffer_store_dwordx2 {v2(vP)}, v{vL8}, {srd(rWS)}, s{sT1} offen sc1")
    a(f"buffer_store_dwordx2 {v2(vP)}, v{vL22}, {srd(rWS)}, s{sT0} offen sc1")
    a(f"s_cmp_lg_u32 s{sJ1}, 0")
    a("s_cbranch_scc1 L_h1b")
    for w in range(4):
        a(f"ds_read_b64 {v2(vP+4+2*w)}, v{vL8} offset:{QP+1024*w+512}")
    a(f"s_lshl_b32 s{sT0}, s{sH1}, 8")
    a(f"s_add_u32 s{sT1}, s{sT0}, {WS_CNT}")
    a(f"s_add_u32 s{sT0}, s{sT0}, {WS_Q1}")
    a(f"v_mov_b32 v{vP+12}, 0")
    a(f"buffer_store_dword v{vP+12}, v{vL22}, {srd(rWS)}, s{sT1} offen sc1")
    a("s_waitcnt lgkmcnt(0)")
    for w in range(1, 4):
        a(f"v_add_f32 v{vP+4}, v{vP+4}, v{vP+4+2*w}")
        a(f"v_add_f32 v{vP+5}, v{vP+5}, v{vP+5+2*w}")
    a(f"v_cvt_pk_bf16_f32 v{vP+4}, v{vP+4}, v{vP+5}")
    a(f"buffer_store_dword v{vP+4}, v{vL4}, {srd(rWS)}, s{sT0} offen sc1")
    lab("L_h1b")
    a(f"v_lshl_add_u32 v{vT0}, v{vG}, 12, v{vC16}")
    a(f"s_lshl_b32 s{sT0}, s2, 14")
    a(f"s_lshl_b32 s{sT1}, s{sW}, 8")
    a(f"s_add_u32 s{sT0}, s{sT0}, s{sT1}")
    a(f"v_add_u32 v{vT0}, s{sT0}, v{vT0}")
    for i in range(4):
        a(f"global_load_dwordx4 {a4(4*i)}, v{vT0}, {sp(sWOp)} offset:{1024*i} {KVF}")
    a(f"s_cmp_eq_u32 s{sCons}, 1")
    a("s_cbranch_scc1 L_loop")
    a(f"buffer_store_dwordx4 {v4(vP)}, v{vFo}, {srd(rWS)}, 0 offen sc1")
    a(f"s_movk_i32 s{sT0}, 3584")
    a(f"v_mul_u32_u24 v{vT0}, s{sT0}, v{vL}")
    a(f"s_mul_i32 s{sT0}, s{sW}, {128*3584}")
    a(f"s_lshl_b32 s{sT1}, s{sP}, 4")
    a(f"s_add_u32 s{sT0}, s{sT0}, s{sT1}")
    a(f"v_add_u32 v{vT0}, s{sT0}, v{vT0}")
    a(f"v_add_u32 v{vT1}, {64*3584}, v{vT0}")
    a(f"global_load_dwordx4 {v4(Gt)}, v{vT0}, {sp(sWGp)} {FFF}")
    a(f"global_load_dwordx4 {v4(Ut)}, v{vT0}, {sp(sWUp)} {FFF}")
    a(f"global_load_dwordx4 {v4(Gt+4)}, v{vT1}, {sp(sWGp)} {FFF}")
    a(f"global_load_dwordx4 {v4(Ut+4)}, v{vT1}, {sp(sWUp)} {FFF}")
    a(f"v_lshl_add_u32 v{vT0}, v{vG}, 10, v{vC16}")
    a(f"s_lshl_b32 s{sT0}, s{sP}, 13")
    a(f"s_lshl_b32 s{sT1}, s{sW}, 8")
    a(f"s_add_u32 s{sT0}, s{sT0}, s{sT1}")
    a(f"s_add_u32 s{sT0}, s{sT0}, 2048")
    a(f"v_add_u32 v{vT0}, s{sT0}, v{vT0}")
    a(f"global_load_dwordx4 {v4(Dn)}, v{vT0}, {sp(sWDp)} offset:-2048 {KVF}")
    a(f"global_load_dwordx4 {v4(Dn+4)}, v{vT0}, {sp(sWDp)} offset:2048 {KVF}")
    a("s_branch L_loop")
    lab("L_h2")
    a(f"s_cmp_eq_u32 s{sCons}, 1")
    a("s_cbranch_scc1 L_h2b")
    c("FFN stage 1")
    a(f"s_lshl_b32 s{sT0}, s{sW}, 12")
    a(f"v_lshl_add_u32 v{vT0}, v{vL}, 5, s{sT0}")
    a(f"ds_write_b128 v{vT0}, {v4(Gt)} offset:{GU}")
    a(f"ds_write_b128 v{vT0}, {v4(Ut)} offset:{GU+16}")
    a(f"ds_write_b128 v{vT0}, {v4(Gt+4)} offset:{GU+2048}")
    a(f"ds_write_b128 v{vT0}, {v4(Ut+4)} offset:{GU+2048+16}")
    a(f"v_lshrrev_b32 v{vT0}, 2, v{vC}")
    a(f"v_lshlrev_b32 v{vT0}, 5, v{vT0}")
    a(f"v_lshl_add_u32 v{vT0}, v{vG}, 8, v{vT0}")
    a(f"v_and_b32 v{vT1}, 3, v{vC}")
    a(f"v_lshl_add_u32 v{vT0}, v{vT1}, 3, v{vT0}")
    a(f"v_add_u32 v{vT0}, s{sT0}, v{vT0}")
    a(f"v_and_b32 v{vT1}, 1, v{vC}")
    a(f"v_lshlrev_b32 v{vT1}, 10, v{vT1}")
    a(f"v_lshl_add_u32 v{vT1}, v{vG}, 4, v{vT1}")
    a(f"s_lshl_b32 s{sT0}, s{sW}, 8")
    a(f"v_add_u32 v{vT1}, s{sT0}, v{vT1}")
    a("s_waitcnt lgkmcnt(0)")
    for t in range(4):
        a(f"ds_read_b128 {v4(vP+4*t)}, v{vT1} offset:{XN+64*t}")
        a(f"ds_read_b64_tr_b16 {v2(FB+4*t)}, v{vT0} offset:{GU+1024*t}")
        a(f"ds_read_b64_tr_b16 {v2(FB+4*t+2)}, v{vT0} offset:{GU+1024*t+128}")
    a("s_waitcnt lgkmcnt(0)")
    for t in range(4):
        a(f"v_mfma_f32_16x16x32_bf16 {v4(vA0)}, {v4(vP+4*t)}, {v4(FB+4*t)}, {'0' if t == 0 else v4(vA0)}")
    a(f"s_lshl_b32 s{sT0}, s{sW}, 7")
    a(f"v_lshl_add_u32 v{vT0}, v{vC}, 2, s{sT0}")
    a("s_nop 7")
    a(f"ds_write_b32 v{vT0}, v{vA0} offset:{FP}")
    a(f"ds_write_b32 v{vT0}, v{vA0+1} offset:{FP+64}")
    a("s_waitcnt lgkmcnt(0)")
    lab("L_h2b")
    a("s_barrier")
    a(f"v_mov_b32 v{vT0}, 1")
    a(f"buffer_store_byte v{vT0}, v{vFlo}, {srd(rDBG)}, 0 offen sc1")
    a(f"s_cmp_eq_u32 s{sCons}, 1")
    a("s_cbranch_scc1 L_loop")
    c("FFN stage 2")
    a(f"v_and_b32 v{vT1}, 0x7f, v{vL4}")
    for w in range(4):
        a(f"ds_read_b32 v{vP+w}, v{vT1} offset:{FP+128*w}")
    a(f"v_lshrrev_b32 v{vT0}, 3, v{vC}")
    a(f"v_lshlrev_b32 v{vT0}, 6, v{vT0}")
    a(f"v_lshl_add_u32 v{vT0}, v{vG}, 2, v{vT0}")
    a("s_waitcnt lgkmcnt(0)")
    for w in range(1, 4):
        a(f"v_add_f32 v{vP}, v{vP}, v{vP+w}")
    rnd_bf16(vP, vP)
    silu(vP + 1, vP)
    a(f"v_mul_f32_dpp v{vP+1}, v{vP}, v{vP+1} row_ror:8 {FULL}")
    a(f"v_cvt_pk_bf16_f32 v{vP+1}, v{vP+1}, v{vP+1}")
    a(f"ds_bpermute_b32 v{vP+2}, v{vT0}, v{vP+1}")
    a(f"ds_bpermute_b32 v{vP+3}, v{vT0}, v{vP+1} offset:16")
    a("s_waitcnt lgkmcnt(0)")
    for r in range(4): a(f"v_and_b32 v{vA0+r}, v{vP+2}, v{vMask+r}")
    for r in range(4): a(f"v_and_b32 v{vA1+r}, v{vP+3}, v{vMask+r}")
    a("s_nop 1")
    a(f"v_mfma_f32_16x16x32_bf16 {v4(FB)}, {v4(vA0)}, {v4(Dn)}, 0")
    a(f"v_mfma_f32_16x16x32_bf16 {v4(FB)}, {v4(vA1)}, {v4(Dn+4)}, {v4(FB)}")
    a("s_nop 7")
    for r in range(4): a(f"v_min_u32 v{FB+r}, -2, v{FB+r}")
    a(f"buffer_store_dwordx4 {v4(FB)}, v{vFo}, {srd(rWS)}, 0 offen sc1")
    a("s_branch L_loop")
    lab("L_hfl")
    a(f"buffer_load_dword v{vFl}, v{vL4}, {srd(rDBG)}, 0 offen sc1")
    a("s_branch L_loop")
    lab("L_hck")
    a(f"v_cmp_ne_u32 vcc, 0x01010101, v{vFl}")
    a("s_nop 4")
    a("s_cbranch_vccz L_hok")
    a(f"s_sub_u32 s{sSpin}, s{sSpin}, 1")
    a("s_cbranch_scc1 L_hok")
    a("s_sleep 4")
    a(f"buffer_load_dword v{vFl}, v{vL4}, {srd(rDBG)}, 0 offen sc1")
    a("s_waitcnt vmcnt(0)")
    a("s_branch L_hck")
    lab("L_hok")
    a(f"s_lshl_b32 s{sT0}, s{sKk}, 8")
    a(f"s_add_u32 s{sT0}, s{sT0}, {WS_Q1}")
    a(f"buffer_load_dwordx4 {v4(vQ1)}, v{vC16}, {srd(rWS)}, s{sT0} offen sc1")
    a(f"s_cmp_eq_u32 s{sCons}, 0")
    a("s_cbranch_scc1 L_loop")
    a(f"s_mul_i32 s{sT0}, s{sCid}, 28672")
    a(f"s_mul_i32 s{sT1}, s{sW}, 7168")
    a(f"s_add_u32 s{sT0}, s{sT0}, s{sT1}")
    a(f"s_add_u32 s{sT0}, s{sT0}, {WS_F}")
    a(f"v_lshl_add_u32 v{vFo}, v{vL}, 4, s{sT0}")
    def f_loads():
        for i in range(7):
            a(f"buffer_load_dwordx4 {v4(vF+4*i)}, v{vFo}, {srd(rWS)}, {'0' if i < 4 else 's%d' % sC4k} offen offset:{(i%4)*1024} sc1")
    f_loads()
    a(f"global_load_ushort v{vT2}, v{vXo}, {sp(sX)}")
    a("s_branch L_loop")
    lab("L_tail")
    stamp(4)
    lab("L_comb")
    rowred(vLs)
    swapadd(vLs, vT0, 16)
    swapadd(vLs, vT0, 32)
    a(f"s_lshl_b32 s{sT0}, s{sW}, 3")
    a(f"s_add_u32 s{sT0}, s{sT0}, s{sPh}")
    a(f"v_mov_b32 v{vP+3}, s{sT0}")
    a(f"v_add_u32 v{vP+2}, s{sPh}, v{vLo}")
    a(f"v_mov_b32 v{vP}, v{vM}")
    a(f"v_mov_b32 v{vP+1}, v{vLs}")
    a(f"ds_write_b128 v{vP+2}, {v4(vO)} offset:{OP}")
    a(f"ds_write_b64 v{vP+3}, {v2(vP)} offset:{MLS}")
    a(f"v_and_b32 v{vP+4}, 24, v{vL8}")
    a(f"v_add_u32 v{vP+4}, s{sPh}, v{vP+4}")
    a(f"v_add_u32 v{vP+5}, s{sPh}, v{vL8}")
    a("s_waitcnt lgkmcnt(0)")
    a("s_barrier")
    a(f"s_cmp_lg_u32 s{sW}, 0")
    a("s_cbranch_scc1 L_comb_done")
    a(f"ds_read_b64 {v2(vP)}, v{vP+4} offset:{MLS}")
    for w in range(4):
        a(f"ds_read_b64 {v2(vP+8+2*w)}, v{vP+5} offset:{OP+512*w}")
    a(f"s_waitcnt lgkmcnt({0 if STAMP else 4})")
    mx, e = vP + 2, vP + 3
    a(f"v_max_f32_dpp v{mx}, v{vP}, v{vP} quad_perm:[2,3,0,1] {FULL}")
    a("s_nop 1")
    a(f"v_max_f32_dpp v{mx}, v{mx}, v{mx} quad_perm:[1,0,3,2] {FULL}")
    a(f"v_sub_f32 v{vP+4}, v{vP}, v{mx}")
    a(f"v_mul_f32 v{vP+4}, {f32(LOG2E)}, v{vP+4}")
    a(f"v_exp_f32 v{vP+4}, v{vP+4}")
    a("s_nop 0")
    a(f"v_mul_f32 v{e}, v{vP+4}, v{vP+1}")
    a("s_waitcnt lgkmcnt(0)")
    o0, o1 = vP + 6, vP + 7
    a(f"v_mul_f32_dpp v{o0}, v{vP+4}, v{vP+8} quad_perm:[0,0,0,0] {FULL}")
    a(f"v_mul_f32_dpp v{o1}, v{vP+4}, v{vP+9} quad_perm:[0,0,0,0] {FULL}")
    a(f"v_add_f32_dpp v{e}, v{e}, v{e} quad_perm:[2,3,0,1] {FULL}")
    for w in range(1, 4):
        a(f"v_fmac_f32_dpp v{o0}, v{vP+4}, v{vP+8+2*w} quad_perm:[{w},{w},{w},{w}] {FULL}")
        a(f"v_fmac_f32_dpp v{o1}, v{vP+4}, v{vP+9+2*w} quad_perm:[{w},{w},{w},{w}] {FULL}")
    a(f"v_add_f32_dpp v{e}, v{e}, v{e} quad_perm:[1,0,3,2] {FULL}")
    a(f"v_min_u32 v{o0}, -2, v{o0}")
    a(f"v_min_u32 v{o1}, -2, v{o1}")
    a(f"buffer_store_dwordx2 {v2(o0)}, v{vL8}, {srd(rWS)}, s{sPart} offen sc1")
    a(f"v_min_u32 v{mx}, -2, v{mx}")
    a(f"v_min_u32 v{e}, -2, v{e}")
    a(f"buffer_store_dwordx2 {v2(mx)}, v{vL22}, {srd(rWS)}, s{sMl} offen sc1")
    lab("L_comb_done")
    a(f"s_cmp_lg_u32 s{sPh}, 0")
    a("s_cbranch_scc1 L_gather")
    c("switch to batch 1")
    stamp(3)
    a(f"s_movk_i32 s{sPh}, {PHOFF}")
    a(f"s_add_u32 s{sT0}, s2, 256")
    a(f"s_lshl_b32 s{sPart}, s{sT0}, 9")
    a(f"s_lshl_b32 s{sMl}, s{sT0}, 3")
    a(f"s_add_u32 s{sMl}, s{sMl}, {WS_ML}")
    a(f"v_mov_b32 v{vM}, {f32(-3.0e38)}")
    a(f"v_mov_b32 v{vLs}, 0")
    for r in range(4): a(f"v_mov_b32 v{vO+r}, 0")
    for r in range(4): a(f"v_mov_b32 v{vQ+r}, v{vQ1+r}")
    a(f"v_lshrrev_b32 v{vT0}, 3, v{vC}")
    a(f"v_and_b32 v{vT1}, 7, v{vC}")
    a(f"v_lshl_add_u32 v{vT0}, v{vT0}, 8, v{vT1}")
    a(f"s_lshl_b32 s{sT0}, s{sKk}, 3")
    a(f"v_add_u32 v{vT0}, s{sT0}, v{vT0}")
    a(f"v_lshlrev_b32 v{vQ1+1}, 3, v{vT0}")
    a(f"v_add_u32 v{vQ1+1}, {WS_ML}, v{vQ1+1}")
    a(f"v_lshlrev_b32 v{vQ1}, 9, v{vT0}")
    a(f"v_lshl_add_u32 v{vQ1}, v{vG}, 4, v{vQ1}")
    a(f"s_lshl_b32 s{sT0}, s{sXc}, 6")
    a(f"v_add_u32 v{vQ1}, s{sT0}, v{vQ1}")
    a(f"s_lshl_b32 s{sT0}, s{sCid}, 15")
    a(f"s_lshl_b32 s{sT1}, s{sW}, 13")
    a(f"s_add_u32 s{sT0}, s{sT0}, s{sT1}")
    a(f"s_add_u32 s{sT0}, s{sT0}, {WS_Y}")
    a(f"v_lshl_add_u32 v{vQ1+2}, v{vL}, 4, s{sT0}")
    a(f"s_lshl_b32 s{sT0}, s{sW}, 8")
    a(f"v_add_u32 v{vFl}, s{sT0}, v{vL4}")
    a(f"s_cmp_eq_u32 s{sCons}, 0")
    a("s_cbranch_scc1 L_loop")
    poll("L_pf", f_loads, vP, vF, 28, first_wait=False)
    for i in range(1, 7):
        for r in range(4):
            a(f"v_add_f32 v{vF+r}, v{vF+r}, v{vF+4*i+r}")
    reduce345(vF)
    a(f"ds_write_b32 v{vFl}, v{vF} offset:{CF}")
    a(f"v_lshlrev_b32 v{vT2}, 16, v{vT2}")
    a(f"v_bfe_u32 v{vF+3}, v{vL}, 3, 1")
    a(f"v_lshl_add_u32 v{vXo}, v{vF+3}, 20, v{vXo}")
    a("s_branch L_loop")
    lab("L_gather")
    stamp(5)
    G = vP + 8
    def g_loads():
        a(f"buffer_load_dwordx4 {v4(G)}, v{vQ1}, {srd(rWS)}, 0 offen sc1")
        a(f"buffer_load_dwordx2 {v2(G+4)}, v{vQ1+1}, {srd(rWS)}, 0 offen sc1")
    g_loads()
    poll("L_pg", g_loads, vP, G, 6)
    def red8(v, op, src=None):
        for n, p in enumerate(("quad_perm:[1,0,3,2]", "quad_perm:[2,3,0,1]", "row_half_mirror")):
            s_ = src if (src is not None and n == 0) else v
            a("s_nop 1")
            a(f"v_{op}_f32_dpp v{v}, v{s_}, v{s_} {p} {FULL}")
    red8(vP, "max", G + 4)
    a(f"v_sub_f32 v{vP}, v{G+4}, v{vP}")
    a(f"v_mul_f32 v{vP}, {f32(LOG2E)}, v{vP}")
    a(f"v_exp_f32 v{vP}, v{vP}")
    a("s_nop 0")
    a(f"v_mul_f32 v{G+4}, v{vP}, v{G+5}")
    for r in range(4): a(f"v_mul_f32 v{G+r}, v{vP}, v{G+r}")
    for p in ("quad_perm:[1,0,3,2]", "quad_perm:[2,3,0,1]", "row_half_mirror"):
        for r in (4, 0, 1, 2, 3):
            a(f"v_add_f32_dpp v{G+r}, v{G+r}, v{G+r} {p} {FULL}")
    a(f"v_rcp_f32 v{G+4}, v{G+4}")
    a("s_nop 0")
    for r in range(4): a(f"v_mul_f32 v{G+r}, v{G+r}, v{G+4}")
    for r in range(4): a(f"v_cvt_pk_bf16_f32 v{G+r}, v{G+r}, v{G+r}")
    def mkAo(i, A):
        for r in range(4):
            a(f"v_and_b32 v{A+r}, v{G+i}, v{vMask+r}")
    vecmat(mkAo, 4, lambda i: a4(4 * i), vO, True)
    a("s_nop 7")
    for r in range(4): a(f"v_min_u32 v{vO+r}, -2, v{vO+r}")
    a(f"buffer_store_dwordx4 {v4(vO)}, v{vYo}, {srd(rWS)}, 0 offen sc1")
    stamp(6)
    a(f"s_cmp_eq_u32 s{sCons}, 0")
    a("s_cbranch_scc1 L_fin")
    Y = vF + 32
    def y_loads():
        for i in range(8):
            a(f"buffer_load_dwordx4 {v4(Y+4*i)}, v{vQ1+2}, {srd(rWS)}, {'0' if i < 4 else 's%d' % sC4k} offen offset:{(i%4)*1024} sc1")
    y_loads()
    vg = vF + 2
    a(f"s_cmp_lg_u32 s{sW}, 0")
    a("s_cbranch_scc1 L_py")
    for w in range(4):
        a(f"ds_read_b32 v{vF+4+w}, v{vFl} offset:{CF+256*w}")
    a("s_waitcnt lgkmcnt(0)")
    for w in range(1, 4):
        a(f"v_add_f32 v{vF+4}, v{vF+4}, v{vF+4+w}")
    rnd_bf16(vF + 4, vF + 4)
    silu(vg, vF + 4)
    poll("L_py", y_loads, vP, Y, 32)
    for st in (16, 8, 4):
        for r in range(st):
            a(f"v_add_f32 v{Y+r}, v{Y+r}, v{Y+st+r}")
    reduce345(Y)
    a(f"ds_write_b32 v{vFl}, v{Y} offset:{CY}")
    a("s_waitcnt lgkmcnt(0)")
    a("s_barrier")
    a(f"s_cmp_lg_u32 s{sW}, 0")
    a("s_cbranch_scc1 L_fin")
    for w in range(4):
        a(f"ds_read_b32 v{vF+4+w}, v{vFl} offset:{CY+256*w}")
    a("s_waitcnt lgkmcnt(0)")
    for w in range(1, 4):
        a(f"v_add_f32 v{vF+4}, v{vF+4}, v{vF+4+w}")
    rnd_bf16(vF + 4, vF + 4)
    a(f"v_mul_f32 v{vF+4}, v{vF+4}, v{vg}")
    rnd_bf16(vF + 4, vF + 4)
    a(f"v_add_f32 v{vF+4}, v{vF+4}, v{vT2}")
    a(f"v_cvt_pk_bf16_f32 v{vF+4}, v{vF+4}, v{vF+4}")
    a(f"buffer_store_short v{vF+4}, v{vXo}, {srd(rOUT)}, 0 offen")
    lab("L_fin")
    if STAMP:
        stamp(7)
        a("s_waitcnt lgkmcnt(0)")
        a(f"s_lshl_b32 s{sT0}, s2, 2")
        a(f"s_add_u32 s{sT0}, s{sT0}, s{sW}")
        a(f"s_lshl_b32 s{sT0}, s{sT0}, 5")
        a(f"s_add_u32 s{sT0}, s{sT0}, {WS_DBG}")
        for k in range(8): a(f"v_mov_b32 v{vP+4+k}, s{sSt+2*k}")
        a(f"v_lshl_or_b32 v{vP+4}, v{vP+4}, 8, s{sT}")
        a(f"buffer_store_dwordx4 {v4(vP+4)}, v{vL22}, {srd(rWS)}, s{sT0} offen")
        a(f"buffer_store_dwordx4 {v4(vP+8)}, v{vL22}, {srd(rWS)}, s{sT0} offen offset:16")
        if opts.get("dbgout"):
            a(f"s_cmp_lg_u32 s{sW}, 0")
            a("s_cbranch_scc1 L_end")
            a(f"s_cmp_gt_u32 s{sCid}, 1")
            a("s_cbranch_scc1 L_end")
            a(f"s_cmp_eq_u32 s{sCons}, 0")
            a("s_cbranch_scc1 L_end")
            for k in range(8):
                a(f"s_sub_u32 s{sT1}, s{sSt+2*k}, s{sSt}")
                a(f"v_mov_b32 v{vP+4+k}, s{sT1}")
            a(f"s_lshl_b32 s{sT0}, s{sCid}, 5")
            a(f"buffer_store_dwordx4 {v4(vP+4)}, v{vL22}, {srd(rDBG)}, s{sT0} offen sc1")
            a(f"buffer_store_dwordx4 {v4(vP+8)}, v{vL22}, {srd(rDBG)}, s{sT0} offen offset:16 sc1")
    lab("L_end")
    a("s_endpgm")
    body = "\n".join(o)
    txt = HEADER + f"; @launch grid=(256,1,1) block=(256,1,1) lds={LDS}\n"
    txt += f""".amdgcn_target "amdgcn-amd-amdhsa--gfx950"
.text
.globl {KNAME}
.p2align 8
.type {KNAME},@function
{body}
.section .rodata,"a"
.p2align 6
.amdhsa_kernel {KNAME}
  .amdhsa_next_free_vgpr 384
  .amdhsa_next_free_sgpr 102
  .amdhsa_accum_offset 256
  .amdhsa_group_segment_fixed_size 0
  .amdhsa_kernarg_size 96
  .amdhsa_user_sgpr_count 2
  .amdhsa_user_sgpr_kernarg_segment_ptr 1
  .amdhsa_system_sgpr_workgroup_id_x 1
  .amdhsa_float_denorm_mode_32 3
.end_amdhsa_kernel
"""
    return txt

if __name__ == "__main__":
    out = sys.argv[1]
    opts = eval(sys.argv[2]) if len(sys.argv) > 2 else {}
    open(out, "w").write(gen(opts))
```

```python
import sys, struct

KNAME = "recurrent_scan__mha_block_cached__swiglu_ffn__decode_kernel"
def f32(x): return "0x%08x" % struct.unpack("<I", struct.pack("<f", x))[0]
HEADER = open("recurrent_scan__mha_block_cached__swiglu_ffn__decode.s.ref").read().split("; Override launch geometry")[0]
LOG2E = 1.4426950408889634

def gen(opts):
    o = []
    def a(s): o.append("  " + s)
    def lab(s): o.append(s + ":")
    def c(s): o.append("  ; " + s)
    KVF = opts.get("kvflags", "nt")
    WQF = opts.get("wqflags", "")
    FFF = opts.get("ffnflags", "")
    FSP = opts.get("fsp", 2)
    STAMP = opts.get("stamp", False)
    S2 = opts.get("S2", 0)
    FT = opts.get("ft", -10)
    NX = opts.get("nx", 2)
    MIX = opts.get("mix", "bq"); NPRE = opts.get("npre", 16); LAG = opts.get("lag", 16); NPOST = opts.get("npost", 12)
    NOFFN = opts.get("noffn", False); NOTAIL = opts.get("notail", False)
    NOQ = opts.get("noq", False); NOSC = opts.get("nosc", False); NOCLR = opts.get("noclr", False)
    NOGU = opts.get("nogu", False); NOFST = opts.get("nofst", False); GUCO = opts.get("guco", False)
    FSTEP = opts.get("fstep", 1); F0 = opts.get("f0", 2)
    TS = opts.get("ts", 18); JB = opts.get("jb", (16, 17, 21)); HM = opts.get("hm", 1)
    assert sorted(list(JB) + [TS, TS + 1, TS + 2]) == list(range(16, 22))
    NK0 = 8 - NX
    NK = NK0 + 8
    HF = min(5, 4 + S2)
    SV = 8 + S2
    assert 0 <= S2 <= 7
    sX, sKp, sVp, sWQp, sWOp, sWGp, sWUp = 4, 6, 8, 10, 12, 16, 18
    sWDp, sOUTp, sDBGp, sWSp = 20, 22, 24, 26
    rS, rWQ, rWS, rDBG, rOUT = 28, 36, 40, 44, 48
    sBase0, sScB, sFin = 32, 33, 34
    sW, sXc, sKk, sH1, sJ1, sBase2, sPart, sPh = 52, 53, 54, 55, 56, 57, 58, 60
    sRot, sFirst2 = 61, 62
    sT, sN0, sN1, sCnt = 63, 64, 65, 66
    sCC, sAA = 68, 70
    sT0, sT1, sT2 = 72, 73, 74
    sP, sCons, sOnes, sTm = 76, 77, 79, 80
    sCid = sKk
    sC4k, sF1, sSpin = 81, 82, 83
    sSt = 84
    def srd(r): return f"s[{r}:{r+3}]"
    def sp(r): return f"s[{r}:{r+1}]"
    vL, vG, vC, vKo, vYo, vL23, vFlo, vM, vLs = 0, 1, 2, 3, 4, 5, 6, 7, 8
    vT0, vT1, vT2 = 9, 10, 11
    vQ, vMask, vA0, vA1, vO = 12, 16, 20, 24, 28
    vP = 32
    vC16, vLo, vIdx, vSa, vFl, vXo, vFo, vL4 = 48, 49, 50, 51, 52, 53, 54, 55
    vQ1 = 56
    vWoA, vPa, vSn, vL2 = 60, 61, 62, 63
    vR, vX1, vX2 = 64, 128, 192
    vF = 192
    aWQ, aWO, aDn, aGU = 0, 64, 0, 80
    def v4(r): return f"v[{r}:{r+3}]"
    def v2(r): return f"v[{r}:{r+1}]"
    def a4(r): return f"a[{r}:{r+3}]"
    XN, FP, QP, CF, CY, OP, MLS = 0, 2048, 4096, 8192, 9216, 10240, 12288
    PHOFF = 2560
    TK, SCL = 15104, 15616
    GU = SCL + 8192
    LDS = GU + 65536
    WS_PART, WS_CNT, WS_Y, WS_F, WS_DBG, WS_SC = 0, 0x80000, 1 << 20, 2 << 20, 3 << 20, 4 << 20
    WS_SIZE = 8 << 20
    FULL = "row_mask:0xf bank_mask:0xf"
    KVB = 256 << 20

    def rnd_bf16(dst, src):
        a(f"v_cvt_pk_bf16_f32 v{dst}, v{src}, v{src}")
        a(f"v_lshlrev_b32 v{dst}, 16, v{dst}")
    def rowred(v, op="add"):
        for n in (8, 4, 2, 1):
            a("s_nop 1")
            a(f"v_{op}_f32_dpp v{v}, v{v}, v{v} row_ror:{n} {FULL}")
    def swapadd(v, t, which):
        a(f"v_mov_b32 v{t}, v{v}")
        a("s_nop 1")
        a(f"v_permlane{which}_swap_b32 v{t}, v{v}")
        a("s_nop 1")
        a(f"v_add_f32 v{v}, v{v}, v{t}")
    def vecmat(mkA, n, B, acc, first_zero, wait=None, post=None):
        A_ = lambda i: vA0 if i % 2 == 0 else vA1
        mkA(0, A_(0))
        for i in range(n):
            if i < n - 1: mkA(i + 1, A_(i + 1))
            else: a("s_nop 1")
            if wait: wait(i)
            cc = "0" if (first_zero and i == 0) else v4(acc)
            a(f"v_mfma_f32_16x16x32_bf16 {v4(acc)}, {v4(A_(i))}, {B(i)}, {cc}")
            if post: post(i)
    def reduce345(r):
        a("s_nop 1")
        for k in range(4):
            a(f"v_add_f32_dpp v{r+k}, v{r+k}, v{r+k} row_ror:8 {FULL}")
        a("s_nop 1")
        a(f"v_permlane16_swap_b32 v{r}, v{r+1}")
        a(f"v_permlane16_swap_b32 v{r+2}, v{r+3}")
        a("s_nop 1")
        a(f"v_add_f32 v{r}, v{r}, v{r+1}")
        a(f"v_add_f32 v{r+2}, v{r+2}, v{r+3}")
        a("s_nop 1")
        a(f"v_permlane32_swap_b32 v{r}, v{r+2}")
        a("s_nop 1")
        a(f"v_add_f32 v{r}, v{r}, v{r+2}")
    def silu(dst, src):
        a(f"v_mul_f32 v{dst}, {f32(-LOG2E)}, v{src}")
        a(f"v_exp_f32 v{dst}, v{dst}")
        a("s_nop 0")
        a(f"v_add_f32 v{dst}, 1.0, v{dst}")
        a(f"v_rcp_f32 v{dst}, v{dst}")
        a("s_nop 0")
        a(f"v_mul_f32 v{dst}, v{src}, v{dst}")
        rnd_bf16(dst, dst)
    def maxchain(t, r0, n):
        a(f"v_max3_u32 v{t}, v{r0}, v{r0+1}, v{r0+2}")
        r = 3
        while r + 1 < n:
            a(f"v_max3_u32 v{t}, v{r0+r}, v{r0+r+1}, v{t}"); r += 2
        if r < n: a(f"v_max_u32 v{t}, v{r0+r}, v{t}")
    def poll(name, loads, t, r0, n, first_wait=True):
        lab(name)
        if first_wait: a("s_waitcnt vmcnt(0)")
        lab(name + "_chk")
        maxchain(t, r0, n)
        a(f"v_cmp_eq_u32 vcc, -1, v{t}")
        a("s_nop 4")
        a(f"s_cbranch_vccz {name}_done")
        a(f"s_sub_u32 s{sSpin}, s{sSpin}, 1")
        a(f"s_cbranch_scc1 {name}_done")
        a("s_mov_b64 exec, vcc")
        loads()
        a("s_waitcnt vmcnt(0)")
        a(f"s_branch {name}_chk")
        lab(name + "_done")
        a("s_mov_b64 exec, -1")
    def jdep(dst, src, tmp):
        for j, p in enumerate(JB):
            d = dst if j == 0 else tmp
            a(f"s_bfe_u32 s{d}, s{src}, {0x10000 + j}")
            a(f"s_lshl_b32 s{d}, s{d}, {p}")
            if j: a(f"s_or_b32 s{dst}, s{dst}, s{tmp}")
    def jext(dst, src, tmp, sh):
        for j, p in enumerate(JB):
            d = dst if j == 0 else tmp
            a(f"s_bfe_u32 s{d}, s{src}, {0x10000 + p}")
            a(f"s_lshl_b32 s{d}, s{d}, {sh + j}")
            if j: a(f"s_or_b32 s{dst}, s{dst}, s{tmp}")
    def stamp(k):
        if STAMP: a(f"s_memrealtime s[{sSt+2*k}:{sSt+2*k+1}]")
    def kvload(dst, off):
        if off == 0:
            a(f"buffer_load_dwordx4 {dst}, v{vKo}, {srd(rS)}, s{sN0} offen {KVF}")
        else:
            a(f"s_add_u32 s{sN1}, s{sN0}, {off}")
            a(f"buffer_load_dwordx4 {dst}, v{vKo}, {srd(rS)}, s{sN1} offen {KVF}")
    def kdots(ring, i):
        k = ring + 4 * i
        a(f"v_dot2_f32_bf16 v{vP+i}, v{k}, v{vQ}, 0")
        for r in range(1, 4):
            a(f"v_dot2_f32_bf16 v{vP+i}, v{k+r}, v{vQ+r}, v{vP+i}")
    def tree(lds_off):
        for i in range(8):
            a(f"v_add_f32_dpp v{vP+i}, v{vP+i}, v{vP+i} row_ror:8 row_mask:0xf bank_mask:0x3")
        for i in range(8):
            a(f"v_add_f32_dpp v{vP+i}, v{vP+i+8}, v{vP+i+8} row_ror:8 row_mask:0xf bank_mask:0xc")
        for i in range(4):
            a(f"v_add_f32_dpp v{vP+i}, v{vP+i}, v{vP+i} row_shl:4 row_mask:0xf bank_mask:0x5")
        for i in range(4):
            a(f"v_add_f32_dpp v{vP+i}, v{vP+i+4}, v{vP+i+4} row_shr:4 row_mask:0xf bank_mask:0xa")
        a("s_nop 0")
        for i in range(4):
            a(f"v_add_f32_dpp v{vP+i}, v{vP+i}, v{vP+i} quad_perm:[2,3,0,1] {FULL}")
        a(f"v_cndmask_b32 v{vP}, v{vP}, v{vP+2}, {sp(sCC)}")
        a(f"v_cndmask_b32 v{vP+1}, v{vP+1}, v{vP+3}, {sp(sCC)}")
        a("s_nop 0")
        a(f"v_add_f32_dpp v{vP}, v{vP}, v{vP} quad_perm:[1,0,3,2] {FULL}")
        a(f"v_add_f32_dpp v{vP+1}, v{vP+1}, v{vP+1} quad_perm:[1,0,3,2] {FULL}")
        a(f"v_cndmask_b32 v{vP}, v{vP}, v{vP+1}, {sp(sAA)}")
        rnd_bf16(vP, vP)
        a(f"v_mul_f32 v{vP}, {f32(128 ** -0.5)}, v{vP}")
        a(f"v_cvt_pk_bf16_f32 v{vP}, v{vP}, v{vP}")
        a(f"ds_write_b16 v{vSa}, v{vP} offset:{lds_off}")

    lab(KNAME)
    a("s_cmp_ge_u32 s2, 256")
    a("s_cbranch_scc1 L_end")
    a("s_load_dwordx16 s[4:19], s[0:1], 0")
    a("s_load_dwordx8 s[20:27], s[0:1], 64")
    stamp(0)
    a(f"v_lshrrev_b32 v{vT0}, 6, v0")
    a(f"v_lshlrev_b32 v{vFlo}, 8, v0")
    a(f"v_and_b32 v{vL}, 63, v0")
    a(f"v_readfirstlane_b32 s{sW}, v{vT0}")
    a(f"v_lshrrev_b32 v{vG}, 4, v{vL}")
    a(f"v_and_b32 v{vC}, 15, v{vL}")
    a(f"s_and_b32 s{sXc}, s2, 7")
    a(f"s_lshr_b32 s{sKk}, s2, 3")
    if HM == 1:
        a(f"s_and_b32 s{sH1}, s2, 31")
    else:
        a(f"s_lshl_b32 s{sH1}, s{sXc}, 2")
        a(f"s_and_b32 s{sT0}, s{sKk}, 3")
        a(f"s_or_b32 s{sH1}, s{sH1}, s{sT0}")
    a(f"s_lshr_b32 s{sJ1}, s2, 5")
    vxo, vxp, vxa, vwq = vP + 10, vP + 11, vM, vSn
    a(f"v_lshlrev_b32 v{vxo}, 5, v{vL}")
    a(f"v_lshrrev_b32 v{vT0}, 5, v{vL}")
    a(f"v_and_b32 v{vT1}, 31, v{vL}")
    a(f"v_lshlrev_b32 v{vT1}, 3, v{vT1}")
    a(f"v_lshl_add_u32 v{vxp}, v{vT0}, 10, v{vT1}")
    a(f"s_lshl_b32 s{sT0}, s{sW}, 8")
    a(f"v_add_u32 v{vxp}, s{sT0}, v{vxp}")
    a(f"v_lshlrev_b32 v{vC16}, 4, v{vC}")
    a(f"v_lshl_add_u32 v{vwq}, v{vG}, 18, v{vC16}")
    a(f"s_lshl_b32 s{sT0}, s{sW}, 20")
    a(f"s_lshl_b32 s{sT1}, s{sH1}, 8")
    a(f"s_add_u32 s{sT0}, s{sT0}, s{sT1}")
    a(f"v_add_u32 v{vwq}, s{sT0}, v{vwq}")
    a(f"v_lshlrev_b32 v{vKo}, 4, v{vL}")
    jdep(sN0, sJ1, sT0)
    a(f"s_lshl_b32 s{sT0}, s{sW}, 10")
    a(f"s_add_u32 s{sN0}, s{sN0}, s{sT0}")
    a(f"s_lshl_b32 s{sT0}, s{sH1}, 22")
    a(f"s_add_u32 s{sN0}, s{sN0}, s{sT0}")
    a(f"s_mov_b32 s{sBase0}, s{sN0}")
    a(f"s_add_u32 s{sN0}, s{sN0}, {128 << 20}")
    a(f"s_and_b32 s{sRot}, s{sJ1}, 3")
    a(f"s_lshl_b32 s{sRot}, s{sRot}, 16")
    for r, n in ((rWQ, 4 << 20), (rS, KVB)):
        a(f"s_mov_b32 s{r+2}, {n}")
        a(f"s_mov_b32 s{r+3}, 0x20000")
    a("s_waitcnt lgkmcnt(0)")
    a(f"global_load_dwordx4 {v4(vP)}, v{vxo}, {sp(sX)}")
    a(f"global_load_dwordx4 {v4(vP+4)}, v{vxo}, {sp(sX)} offset:16")
    a(f"global_load_dwordx2 {v2(vP+8)}, v{vxp}, {sp(sX)}")
    for r, p in ((rS, sKp), (rWQ, sWQp)):
        a(f"s_mov_b32 s{r}, s{p}")
        a(f"s_mov_b32 s{r+1}, s{p+1}")
    def wqload(i):
        a(f"s_add_u32 s{sT0}, s{sRot}, {i*8192}")
        a(f"s_and_b32 s{sT0}, s{sT0}, 0x3ffff")
        if NOQ: a(f"s_mov_b32 s{sT0}, 0x7000000")
        a(f"buffer_load_dwordx4 {a4(aWQ+4*(i%16))}, v{vwq}, {srd(rWQ)}, s{sT0} offen {WQF}")
    Gt, Ut, Dn, FB = vF, vF + 8, vF + 16, vF + 24
    vSel = [vQ, vQ + 1, vQ + 2, vQ + 3, vQ1, vQ1 + 1, vQ1 + 2, vQ1 + 3]
    vXn = vP
    XR = [vX1, vX2][:NX]
    bulk = [(f"x{j}", i) for j in range(NX) for i in range(16)] + [("k", i) for i in range(16)]
    seq = []; qi = bi = 0; p = 0
    while qi < 32:
        if MIX[p % len(MIX)] == "q" or bi >= len(bulk): seq.append(("q", qi)); qi += 1
        else: seq.append(bulk[bi]); bi += 1
        p += 1
    nq_end = len(seq)
    seq += bulk[bi:]
    assert sum(k == "q" for k, _ in seq[:NPRE]) <= 16
    issued = []
    def issue1(op):
        kind, i = op
        if kind == "q": wqload(i)
        elif kind == "k": kvload(v4(vR + 4 * i), 4096 * i)
        else:
            j = int(kind[1]); kvload(v4(XR[j] + 4 * i), ((NK0 + j) << TS) + 4096 * i)
        issued.append(op)
    def younger(op): return min(63, len(issued) - 1 - issued.index(op))
    for op in seq[:NPRE]: issue1(op)
    for r, p, n in ((rWS, sWSp, WS_SIZE), (rDBG, sDBGp, 256), (rOUT, sOUTp, 2048)):
        a(f"s_mov_b32 s{r}, s{p}")
        a(f"s_mov_b32 s{r+1}, s{p+1}")
        a(f"s_mov_b32 s{r+2}, {n}")
        a(f"s_mov_b32 s{r+3}, 0x20000")
    a(f"s_mov_b32 s{sCC}, 0xcccccccc"); a(f"s_mov_b32 s{sCC+1}, 0xcccccccc")
    a(f"s_mov_b32 s{sAA}, 0xaaaaaaaa"); a(f"s_mov_b32 s{sAA+1}, 0xaaaaaaaa")
    a(f"s_mov_b32 s{sOnes}, 0x3f803f80")
    a(f"s_mov_b32 s{sSpin}, 0x80000")
    a(f"s_movk_i32 s{sC4k}, 4096")
    a(f"s_mov_b32 s{sPh}, 0")
    TFL = NK0 + 1
    a(f"s_and_b32 s{sT0}, s{sKk}, 7")
    a(f"s_cmp_eq_u32 s{sT0}, s{sXc}")
    a(f"s_cselect_b32 s{sCons}, 1, 0")
    a(f"s_mov_b32 s{sP}, 99")
    a(f"s_add_u32 s{sBase2}, s{sKk}, 32")
    a(f"s_lshl_b32 s{sBase2}, s{sBase2}, 22")
    a(f"s_lshl_b32 s{sT0}, s{sW}, 10")
    a(f"s_add_u32 s{sBase2}, s{sBase2}, s{sT0}")
    a(f"s_lshl_b32 s{sScB}, s{sKk}, 15")
    a(f"s_add_u32 s{sScB}, s{sScB}, s{sT0}")
    a(f"s_add_u32 s{sScB}, s{sScB}, {WS_SC}")
    jdep(sFirst2, sXc, sT0)
    a(f"s_add_u32 s{sFirst2}, s{sFirst2}, s{sBase2}")
    a(f"s_lshl_b32 s{sCnt}, s{sKk}, 8")
    a(f"s_add_u32 s{sCnt}, s{sCnt}, {WS_CNT}")
    a(f"s_lshl_b32 s{sT0}, s{sH1}, 3")
    a(f"s_add_u32 s{sT0}, s{sT0}, s{sJ1}")
    a(f"s_lshl_b32 s{sPart}, s{sT0}, 10")
    a(f"v_lshlrev_b32 v{vL23}, 23, v{vL}")
    a(f"v_lshlrev_b32 v{vL4}, 2, v{vL}")
    a(f"v_lshlrev_b32 v{vL2}, 1, v{vL}")
    a(f"s_lshl_b32 s{sT0}, s{sW}, 11")
    a(f"v_add_u32 v{vSa}, s{sT0}, v{vL2}")
    a(f"v_add_u32 v{vFlo}, s2, v{vFlo}")
    a(f"v_add_u32 v{vT0}, 31, v{vL}")
    a(f"v_lshrrev_b32 v{vT0}, 6, v{vT0}")
    a(f"v_lshl_add_u32 v{vPa}, v{vT0}, 23, v{vKo}")
    a(f"v_and_b32 v{vT0}, 1, v{vG}")
    a(f"v_lshlrev_b32 v{vT0}, 4, v{vT0}")
    a(f"v_lshl_add_u32 v{vLo}, v{vC}, 5, v{vT0}")
    a(f"v_lshl_add_u32 v{vWoA}, v{vG}, 12, v{vC16}")
    a(f"s_lshr_b32 s{sT0}, s2, 2")
    a(f"s_lshl_b32 s{sT0}, s{sT0}, 16")
    a(f"s_lshl_b32 s{sT1}, s{sW}, 14")
    a(f"s_add_u32 s{sT0}, s{sT0}, s{sT1}")
    a(f"s_and_b32 s{sT1}, s2, 3")
    a(f"s_lshl_b32 s{sT1}, s{sT1}, 8")
    a(f"s_add_u32 s{sT0}, s{sT0}, s{sT1}")
    a(f"v_add_u32 v{vWoA}, s{sT0}, v{vWoA}")
    a(f"v_lshrrev_b32 v{vT0}, 1, v{vG}")
    a(f"v_lshlrev_b32 v{vT0}, 4, v{vT0}")
    a(f"v_lshrrev_b32 v{vT1}, 2, v{vC}")
    a(f"v_add_u32 v{vT0}, v{vT0}, v{vT1}")
    a(f"v_and_b32 v{vT1}, 0x7f, v{vLo}")
    a(f"v_lshl_add_u32 v{vYo}, v{vT0}, 13, v{vT1}")
    a(f"s_and_b32 s{sT0}, s2, 3")
    a(f"s_lshl_b32 s{sT0}, s{sT0}, 15")
    a(f"s_lshr_b32 s{sT1}, s2, 2")
    a(f"s_lshl_b32 s{sT1}, s{sT1}, 7")
    a(f"s_add_u32 s{sT0}, s{sT0}, s{sT1}")
    a(f"s_add_u32 s{sT0}, s{sT0}, {WS_Y}")
    a(f"v_add_u32 v{vYo}, s{sT0}, v{vYo}")
    a(f"s_lshl_b32 s{sT0}, s{sW}, 2")
    a(f"v_add_u32 v{vT0}, s{sT0}, v{vT0}")
    a(f"v_lshl_add_u32 v{vFo}, v{vT0}, 13, v{vT1}")
    a(f"v_add_u32 v{vFo}, {WS_F}, v{vFo}")
    a(f"v_and_b32 v{vXo}, 7, v{vL}")
    a(f"v_lshl_add_u32 v{vXo}, v{vXo}, 2, v{vG}")
    a(f"s_lshl_b32 s{sT0}, s{sCid}, 6")
    a(f"v_lshl_add_u32 v{vXo}, v{vXo}, 1, s{sT0}")
    a(f"v_and_b32 v{vT0}, 1, v{vC}")
    a(f"v_lshlrev_b32 v{vT0}, 4, v{vT0}")
    a(f"v_mov_b32 v{vT1}, 0xffff")
    a(f"v_lshlrev_b32 v{vT0}, v{vT0}, v{vT1}")
    a(f"v_bfe_u32 v{vT1}, v{vC}, 1, 2")
    for r in range(4):
        a(f"v_cmp_eq_u32 vcc, {r}, v{vT1}")
        a("s_nop 1")
        a(f"v_cndmask_b32 v{vMask+r}, 0, v{vT0}, vcc")
    a(f"v_mov_b32 v{vT0}, 0x0c0c0c0c")
    a(f"s_mov_b32 s{sT0}, 0x01000100")
    a(f"s_mov_b32 s{sT1}, 0x03020302")
    for r in range(4):
        a(f"v_bfi_b32 v{vSel[r]}, v{vMask+r}, s{sT0}, v{vT0}")
        a(f"v_bfi_b32 v{vSel[4+r]}, v{vMask+r}, s{sT1}, v{vT0}")
    a(f"v_lshrrev_b32 v{vxa}, 3, v{vC}")
    a(f"v_lshlrev_b32 v{vxa}, 10, v{vxa}")
    a(f"v_lshl_add_u32 v{vxa}, v{vG}, 6, v{vxa}")
    a(f"s_lshl_b32 s{sT0}, s{sW}, 8")
    a(f"v_add_u32 v{vxa}, s{sT0}, v{vxa}")
    a(f"v_mov_b32 v{vT1}, -1")
    a(f"ds_write_b32 v{vL4}, v{vT1} offset:{TK}")
    a(f"ds_write_b32 v{vL4}, v{vT1} offset:{TK+256}")
    a(f"s_mov_b32 s{sFin}, 0")
    c("LayerNorm")
    a(f"s_waitcnt vmcnt({NPRE})")
    stamp(1)
    vs, vmn, vacc0, vacc1, vt, vu = vA0, vA0 + 1, vA0 + 2, vA0 + 3, vA1, vA1 + 1
    a(f"v_dot2_f32_bf16 v{vs}, v{vP}, s{sOnes}, 0")
    for r in range(1, 8):
        a(f"v_dot2_f32_bf16 v{vs}, v{vP+r}, s{sOnes}, v{vs}")
    a("s_nop 1")
    rowred(vs)
    swapadd(vs, vt, 16)
    a(f"v_mul_f32 v{vmn}, {f32(1/512)}, v{vs}")
    a(f"v_mov_b32 v{vacc0}, 0")
    a(f"v_mov_b32 v{vacc1}, 0")
    for r in range(8):
        a(f"v_lshlrev_b32 v{vt}, 16, v{vP+r}")
        a(f"v_and_b32 v{vu}, 0xffff0000, v{vP+r}")
        a(f"v_sub_f32 v{vt}, v{vt}, v{vmn}")
        a(f"v_sub_f32 v{vu}, v{vu}, v{vmn}")
        a(f"v_fmac_f32 v{vacc0}, v{vt}, v{vt}")
        a(f"v_fmac_f32 v{vacc1}, v{vu}, v{vu}")
    a(f"v_add_f32 v{vs}, v{vacc0}, v{vacc1}")
    rowred(vs)
    swapadd(vs, vt, 16)
    a(f"v_mul_f32 v{vs}, {f32(1/512)}, v{vs}")
    rnd_bf16(vs, vs)
    a(f"v_add_f32 v{vs}, {f32(1e-5)}, v{vs}")
    rnd_bf16(vs, vs)
    a(f"v_sqrt_f32 v{vs}, v{vs}")
    rnd_bf16(vmn, vmn)
    rnd_bf16(vs, vs)
    a(f"v_rcp_f32 v{vs}, v{vs}")
    for r in (8, 9):
        a(f"v_lshlrev_b32 v{vt}, 16, v{vP+r}")
        a(f"v_and_b32 v{vu}, 0xffff0000, v{vP+r}")
        a(f"v_sub_f32 v{vt}, v{vt}, v{vmn}")
        a(f"v_sub_f32 v{vu}, v{vu}, v{vmn}")
        a(f"v_cvt_pk_bf16_f32 v{vu}, v{vt}, v{vu}")
        a(f"v_lshlrev_b32 v{vt}, 16, v{vu}")
        a(f"v_and_b32 v{vu}, 0xffff0000, v{vu}")
        a(f"v_mul_f32 v{vt}, v{vt}, v{vs}")
        a(f"v_mul_f32 v{vu}, v{vu}, v{vs}")
        a(f"v_cvt_pk_bf16_f32 v{vP+r}, v{vt}, v{vu}")
    a(f"ds_write_b64 v{vxp}, {v2(vP+8)} offset:{XN}")
    a("s_waitcnt lgkmcnt(0)")
    for t in range(4):
        a(f"s_lshr_b32 s{sT0}, s{sRot}, 12")
        a(f"s_add_u32 s{sT0}, s{sT0}, {16*t}")
        a(f"s_and_b32 s{sT0}, s{sT0}, 63")
        a(f"v_add_u32 v{vt}, s{sT0}, v{vxa}")
        a(f"ds_read_b128 {v4(vXn+4*t)}, v{vt} offset:{XN}")
    c("q projection interleaved with the load stream")
    qdone = [0]
    def qstep():
        j = qdone[0]
        A = vA0 if j % 2 == 0 else vA1
        if j == 0: a("s_waitcnt lgkmcnt(0)")
        for r in range(4):
            a(f"v_perm_b32 v{A+r}, v{vXn+j//2}, v{vXn+j//2}, v{vSel[4*(j%2)+r]}")
        a(f"s_waitcnt vmcnt({younger(('q', j))})")
        a("s_nop 0")
        a(f"v_mfma_f32_16x16x32_bf16 {v4(vO)}, {v4(A)}, {a4(aWQ+4*(j%16))}, {'0' if j == 0 else v4(vO)}")
        qdone[0] += 1
    stop = min(len(seq), nq_end + NPOST)
    for op in seq[NPRE:stop]:
        if op[0] == "q":
            while qdone[0] <= op[1] - 16: qstep()
        issue1(op)
        while qdone[0] < 32 and ("q", qdone[0]) in issued and younger(("q", qdone[0])) >= LAG: qstep()
    while qdone[0] < 32: qstep()
    a(f"v_lshrrev_b32 v{vT0}, 1, v{vG}")
    a(f"v_lshl_add_u32 v{vT0}, v{vT0}, 9, v{vLo}")
    a(f"s_lshl_b32 s{sT0}, s{sW}, 10")
    a(f"v_add_u32 v{vT0}, s{sT0}, v{vT0}")
    a(f"v_mov_b32 v{vM}, {f32(-3.0e38)}")
    a(f"v_mov_b32 v{vLs}, 0")
    a(f"s_mov_b32 s{sT}, 0")
    a(f"s_lshl_b32 s{sT0}, s{sW}, 9")
    a(f"v_add_u32 v{vLo}, s{sT0}, v{vLo}")
    a(f"v_lshlrev_b32 v{vT1}, 3, v{vL}")
    a(f"ds_write_b128 v{vT0}, {v4(vO)} offset:{QP}")
    a("s_waitcnt lgkmcnt(0)")
    a("s_barrier")
    def qfetch(dst, off):
        for w in range(4):
            a(f"ds_read_b64 {v2(vP+2*w)}, v{vT1} offset:{QP+1024*w+off}")
        a("s_waitcnt lgkmcnt(0)")
        for w in range(1, 4):
            a(f"v_add_f32 v{vP}, v{vP}, v{vP+2*w}")
            a(f"v_add_f32 v{vP+1}, v{vP+1}, v{vP+2*w+1}")
        a(f"v_cvt_pk_bf16_f32 v{vP}, v{vP}, v{vP+1}")
        for r in range(4):
            a(f"ds_bpermute_b32 v{dst+r}, v{vC16}, v{vP} offset:{4*r}")
    qfetch(vQ, 512)
    stamp(2)
    for op in seq[stop:]: issue1(op)
    assert [op for op in issued if op[0] == "k"] == [("k", i) for i in range(16)]
    for r in range(4): a(f"v_mov_b32 v{vO+r}, 0")
    a(f"s_add_u32 s{sN0}, s{sN0}, {1 << TS}")
    a("s_waitcnt lgkmcnt(0)")
    c("K loop")
    a(".p2align 6")
    lab("L_kloop")
    for i in range(16):
        a("s_waitcnt vmcnt(15)")
        kdots(vR, i)
        kvload(v4(vR + 4 * i), 4096 * i)
    tree(SCL)
    a(f"v_add_u32 v{vSa}, 128, v{vSa}")
    a(f"s_add_u32 s{sT}, s{sT}, 1")
    a(f"s_add_u32 s{sN0}, s{sN0}, {1 << TS}")
    hooks = [(1, "L_h1"), (TFL, "L_h2"), (NK0 - 1, "L_hb1"), (NK0, "L_hq1"), (NK - 1, "L_hv"), (NK, "L_kend")]
    assert len(set(t for t, _ in hooks)) == len(hooks)
    for t, l in hooks:
        a(f"s_cmp_eq_u32 s{sT}, {t}")
        a(f"s_cbranch_scc1 {l}")
    a("s_branch L_kloop")
    lab("L_h1")
    c("clears first, then the extra K tiles")
    for r in range(4): a(f"v_mov_b32 v{vA0+r}, -1")
    a(f"s_cmp_eq_u32 s{sCons}, 0")
    a("s_cbranch_scc1 L_h1a")
    a(f"s_lshl_b32 s{sT0}, s{sCid}, 13")
    a(f"s_lshl_b32 s{sT1}, s{sW}, 11")
    a(f"s_add_u32 s{sT0}, s{sT0}, s{sT1}")
    a(f"s_add_u32 s{sT0}, s{sT0}, {WS_F}")
    a(f"buffer_store_dwordx4 {v4(vA0)}, v{vKo}, {srd(rWS)}, s{sT0} offen sc1")
    a(f"buffer_store_dwordx4 {v4(vA0)}, v{vKo}, {srd(rWS)}, s{sT0} offen offset:1024 sc1")
    lab("L_h1a")
    a(f"s_cmp_lg_u32 s{sW}, 0")
    a("s_cbranch_scc1 L_h1b")
    a(f"buffer_store_dwordx4 {v4(vA0)}, v{vYo}, {srd(rWS)}, 0 offen sc1")
    a(f"buffer_store_dwordx4 {v4(vA0)}, v{vPa}, {srd(rWS)}, s{sPart} offen sc1")
    a(f"s_add_u32 s{sT0}, s2, 256")
    a(f"s_lshl_b32 s{sT0}, s{sT0}, 10")
    a(f"buffer_store_dwordx4 {v4(vA0)}, v{vPa}, {srd(rWS)}, s{sT0} offen sc1")
    a(f"s_cmp_lg_u32 s{sXc}, 0")
    a("s_cbranch_scc1 L_h1b")
    a(f"v_mov_b32 v{vT0}, 0")
    a(f"buffer_store_dword v{vT0}, v{vL23}, {srd(rWS)}, s{sCnt} offen sc1")
    lab("L_h1b")
    for j in range(NX):
        for i in range(16): kdots(XR[j], i)
        tree(SCL + (NK0 + j - 1) * 128)
    a("s_branch L_kloop")
    lab("L_h2")
    a("s_barrier")
    a(f"v_mov_b32 v{vT0}, 1")
    a(f"buffer_store_byte v{vT0}, v{vFlo}, {srd(rDBG)}, 0 offen sc1")
    a("s_branch L_kloop")
    lab("L_hb1")
    a(f"s_mov_b32 s{sN0}, s{sBase0}")
    a("s_branch L_kloop")
    lab("L_hq1")
    a(f"v_lshlrev_b32 v{vT1}, 3, v{vL}")
    qfetch(vQ, 0)
    a(f"v_add_u32 v{vSa}, {128*NX}, v{vSa}")
    a(f"s_lshl_b32 s{sT0}, s{sW}, 11")
    a(f"v_add_u32 v{vT0}, s{sT0}, v{vKo}")
    a(f"ds_read_b128 {v4(vA1)}, v{vT0} offset:{SCL}")
    a(f"s_lshl_b32 s{sT0}, s{sPart}, 2")
    a(f"s_lshl_b32 s{sT1}, s{sW}, 10")
    a(f"s_add_u32 s{sT0}, s{sT0}, s{sT1}")
    a(f"s_add_u32 s{sT0}, s{sT0}, {WS_SC}")
    a("s_waitcnt lgkmcnt(0)")
    if not NOSC: a(f"buffer_store_dwordx4 {v4(vA1)}, v{vKo}, {srd(rWS)}, s{sT0} offen sc1")
    a("s_branch L_kloop")
    lab("L_hv")
    a(f"s_mov_b32 s{rS}, s{sVp}")
    a(f"s_mov_b32 s{rS+1}, s{sVp+1}")
    a(f"s_mov_b32 s{sN0}, s{sBase0}")
    a("s_branch L_kloop")
    lab("L_kend")
    stamp(3)
    a(f"v_and_b32 v{vL2}, 0x7c, v{vL2}")
    a(f"s_lshl_b32 s{sT0}, s{sW}, 11")
    a(f"v_add_u32 v{vSa}, s{sT0}, v{vL2}")
    a(f"ds_read_b32 v{vSn}, v{vSa} offset:{SCL+1024}")
    vSh = vQ
    a(f"v_and_b32 v{vSh}, 1, v{vL}")
    a(f"v_lshlrev_b32 v{vSh}, 4, v{vSh}")
    a(f"s_mov_b32 s{sT}, 0")
    vGp, vGm, vGy = vQ1, vQ1 + 1, vQ1 + 2
    a(f"v_lshrrev_b32 v{vT0}, 3, v{vC}")
    a(f"v_and_b32 v{vT1}, 7, v{vC}")
    a(f"v_lshl_add_u32 v{vT0}, v{vT0}, 8, v{vT1}")
    a(f"s_lshl_b32 s{sT0}, s{sKk}, 3")
    a(f"v_add_u32 v{vT0}, s{sT0}, v{vT0}")
    a(f"v_lshlrev_b32 v{vGm}, 10, v{vT0}")
    a(f"v_lshl_add_u32 v{vGp}, v{vG}, 4, v{vGm}")
    a(f"s_lshr_b32 s{sT0}, s{sXc}, 2")
    a(f"s_lshl_b32 s{sT0}, s{sT0}, 8")
    a(f"s_lshl_b32 s{sT1}, s{sW}, 6")
    a(f"s_add_u32 s{sT0}, s{sT0}, s{sT1}")
    a(f"v_add_u32 v{vGp}, s{sT0}, v{vGp}")
    a(f"s_lshl_b32 s{sT0}, s{sCid}, 13")
    a(f"s_lshl_b32 s{sT1}, s{sW}, 11")
    a(f"s_add_u32 s{sT0}, s{sT0}, s{sT1}")
    a(f"s_add_u32 s{sT0}, s{sT0}, {WS_Y}")
    a(f"v_add_u32 v{vGy}, s{sT0}, v{vKo}")
    vCl = vQ + 1
    a(f"s_lshl_b32 s{sT0}, s{sW}, 8")
    a(f"v_add_u32 v{vCl}, s{sT0}, v{vL4}")
    a("s_waitcnt lgkmcnt(0)")
    c("V loop: vSn = scores (u16) of the block in flight, sN0 = next block")
    a(".p2align 6")
    lab("L_vloop")
    vS, tm, al, pp = vP, vP + 1, vP + 2, vP + 3
    a(f"v_lshrrev_b32 v{vS}, v{vSh}, v{vSn}")
    a(f"v_lshlrev_b32 v{vS}, 16, v{vS}")
    a(f"s_cmp_ge_u32 s{sT}, 7")
    a("s_cbranch_scc1 L_sg")
    a(f"v_add_u32 v{vSa}, 128, v{vSa}")
    a(f"ds_read_b32 v{vSn}, v{vSa} offset:{SCL+1024}")
    a("s_branch L_sreq")
    lab("L_sg")
    a(f"s_cmp_ge_u32 s{sN0}, {KVB}")
    a("s_cbranch_scc1 L_vlast")
    jext(sT0, sN0, sT1, 12)
    a(f"s_bfe_u32 s{sT1}, s{sN0}, {0x30000 + TS}")
    a(f"s_lshl_b32 s{sT1}, s{sT1}, 7")
    a(f"s_add_u32 s{sT0}, s{sT0}, s{sT1}")
    a(f"s_add_u32 s{sT0}, s{sT0}, s{sScB}")
    a(f"buffer_load_dword v{vSn}, v{vL2}, {srd(rWS)}, s{sT0} offen sc1")
    lab("L_sreq")
    a(f"s_cmp_lt_u32 s{sT}, {SV-2}")
    a("s_cbranch_scc1 L_sdone")
    a(f"s_cmp_lg_u32 s{sW}, 0")
    a("s_cbranch_scc1 L_sdone")
    a(f"v_mov_b32 v{vIdx}, 1")
    a(f"buffer_atomic_add v{vIdx}, v{vL23}, {srd(rWS)}, s{sCnt} offen sc0 sc1")
    lab("L_sdone")
    def softmax():
        a(f"v_max_f32_dpp v{tm}, v{vS}, v{vS} row_ror:8 {FULL}")
        for n in (4, 2, 1):
            a("s_nop 1")
            a(f"v_max_f32_dpp v{tm}, v{tm}, v{tm} row_ror:{n} {FULL}")
        a("s_nop 1")
        a(f"v_max_f32_dpp v{tm}, v{tm}, v{tm} row_bcast:15 row_mask:0xa bank_mask:0xf")
        a("s_nop 1")
        a(f"v_max_f32_dpp v{tm}, v{tm}, v{tm} row_bcast:31 row_mask:0xc bank_mask:0xf")
        a("s_nop 0")
        a(f"v_readlane_b32 s{sTm}, v{tm}, 63")
        a("s_nop 1")
        a(f"v_max_f32 v{tm}, s{sTm}, v{vM}")
        a(f"v_sub_f32 v{al}, v{vM}, v{tm}")
        a(f"v_sub_f32 v{pp}, v{vS}, v{tm}")
        a(f"v_mul_f32 v{al}, {f32(LOG2E)}, v{al}")
        a(f"v_mul_f32 v{pp}, {f32(LOG2E)}, v{pp}")
        a(f"v_exp_f32 v{al}, v{al}")
        a(f"v_exp_f32 v{pp}, v{pp}")
        a(f"v_mov_b32 v{vM}, v{tm}")
        a(f"v_fma_f32 v{vLs}, v{vLs}, v{al}, v{pp}")
        a(f"v_cvt_pk_bf16_f32 v{pp}, v{pp}, v{pp}")
        for r in range(4): a(f"v_mul_f32 v{vO+r}, v{vO+r}, v{al}")
    softmax()
    def mkAp(i, A):
        for r in range(4):
            a(f"v_and_b32_dpp v{A+r}, v{pp}, v{vMask+r} row_newbcast:{i} {FULL}")
    vecmat(mkAp, 16, lambda i: v4(vR + 4 * i), vO, False, lambda i: a("s_waitcnt vmcnt(15)"), lambda i: kvload(v4(vR + 4 * i), 4096 * i))
    a(f"s_add_u32 s{sT}, s{sT}, 1")
    a("s_waitcnt lgkmcnt(0)")
    a(f"s_add_u32 s{sN0}, s{sN0}, {1 << TS}")
    a(f"s_cmp_eq_u32 s{sT}, 7")
    a(f"s_cselect_b32 s{sN0}, s{sFirst2}, s{sN0}")
    a(f"s_cmp_ge_u32 s{sT}, {SV-1}")
    a("s_cbranch_scc1 L_dyn")
    lab("L_vhooks")
    a(f"s_cmp_gt_u32 s{sT}, 8")
    a("s_cbranch_scc1 L_vloop")
    for t, l in ((8, "L_comb"), (HF, "L_hfl"), (HF + 1, "L_hck")):
        a(f"s_cmp_eq_u32 s{sT}, {t}")
        a(f"s_cbranch_scc1 {l}")
    a("s_branch L_vloop")
    lab("L_dyn")
    a(f"s_lshl_b32 s{sT1}, s{sT}, 2")
    a(f"v_mov_b32 v{vT0}, s{sT1}")
    a(f"s_cmp_lg_u32 s{sW}, 0")
    a("s_cbranch_scc1 L_fol")
    a(f"v_readfirstlane_b32 s{sT0}, v{vIdx}")
    a("s_nop 3")
    a(f"s_min_u32 s{sT0}, s{sT0}, 0xffff")
    a(f"v_mov_b32 v{vIdx}, s{sT0}")
    a(f"ds_write_b32 v{vT0}, v{vIdx} offset:{TK}")
    a("s_branch L_got")
    lab("L_fol")
    a(f"ds_read_b32 v{vIdx}, v{vT0} offset:{TK}")
    a("s_waitcnt lgkmcnt(0)")
    a(f"v_readfirstlane_b32 s{sT0}, v{vIdx}")
    a("s_nop 3")
    a(f"s_cmp_eq_u32 s{sT0}, -1")
    a("s_cbranch_scc1 L_fol")
    lab("L_got")
    POOL = 8 * (8 - S2); A_ = POOL + FT
    assert FT <= 0 and A_ >= 0
    a(f"s_sub_u32 s{sT1}, s{sT0}, {A_}")
    a(f"s_min_u32 s{sT1}, s{sT1}, 3")
    a(f"s_lshl_b32 s{sP}, s{sT1}, 5")
    a(f"s_add_u32 s{sP}, s{sP}, s{sKk}")
    a(f"s_cmp_lt_u32 s{sKk}, 24")
    a(f"s_cselect_b32 s{sT1}, 2, 1")
    a(f"s_cmp_ge_u32 s{sT0}, {A_}")
    a(f"s_cselect_b32 s{sT1}, s{sT1}, 0")
    a(f"s_sub_u32 s{sT0}, s{sT0}, s{sT1}")
    a(f"s_cmp_lt_u32 s{sP}, 56")
    a(f"s_cselect_b32 s{sT0}, 0xffff, s{sT0}")
    jdep(sT1, sT0, sT2)
    a(f"s_lshr_b32 s{sT2}, s{sT0}, 3")
    a(f"s_add_u32 s{sT2}, s{sT2}, {S2}")
    a(f"s_lshl_b32 s{sT2}, s{sT2}, {TS}")
    a(f"s_add_u32 s{sT1}, s{sT1}, s{sT2}")
    a(f"s_add_u32 s{sT1}, s{sT1}, s{sBase2}")
    a(f"s_cmp_ge_u32 s{sT0}, {POOL}")
    a(f"s_cselect_b32 s{sN0}, {KVB}, s{sT1}")
    a("s_branch L_vhooks")
    lab("L_hfl")
    a(f"buffer_load_dword v{vFl}, v{vL4}, {srd(rDBG)}, 0 offen sc1")
    a("s_branch L_vloop")
    lab("L_hck")
    a(f"v_cmp_ne_u32 vcc, 0x01010101, v{vFl}")
    a("s_nop 4")
    a("s_cbranch_vccz L_hok")
    a(f"s_sub_u32 s{sSpin}, s{sSpin}, 1")
    a("s_cbranch_scc1 L_hok")
    a("s_sleep 4")
    a(f"buffer_load_dword v{vFl}, v{vL4}, {srd(rDBG)}, 0 offen sc1")
    a("s_waitcnt vmcnt(0)")
    a("s_branch L_hck")
    lab("L_hok")
    a(f"s_cmp_eq_u32 s{sCons}, 0")
    a("s_cbranch_scc1 L_vloop")
    a(f"global_load_ushort v{vT2}, v{vXo}, {sp(sX)}")
    a("s_branch L_vloop")
    lab("L_vlast")
    for i in range(4): a(f"global_load_dwordx4 {a4(aWO+4*i)}, v{vWoA}, {sp(sWOp)} offset:{1024*i} {KVF}")
    a(f"s_cmp_lt_u32 s{sP}, {0 if NOFFN else 56}")
    a(f"s_cselect_b32 s{rWQ+2}, 1835008, 0")
    a(f"v_lshrrev_b32 v{vT0}, 2, v{vL}")
    a(f"s_movk_i32 s{sT1}, 3584")
    a(f"v_mul_u32_u24 v{vT0}, s{sT1}, v{vT0}")
    a(f"v_and_b32 v{vT1}, 0x30, v{vKo}")
    a(f"s_mul_i32 s{sT1}, s{sW}, {128*3584}")
    a(f"s_lshl_b32 s{sT2}, s{sP}, 6")
    a(f"s_add_u32 s{sT1}, s{sT1}, s{sT2}")
    a(f"v_add3_u32 v{vT0}, v{vT0}, v{vT1}, s{sT1}")
    softmax()
    fl = [("g", i) for i in range(8)] + [("u", i) for i in range(8)] + [("d", i) for i in range(8)]
    nis = [4]
    def fissue(n):
        for kind, i in fl[:n]:
            if i == 0:
                p = {"g": sWGp, "u": sWUp, "d": sWDp}[kind]
                a(f"s_mov_b32 s{rWQ}, s{p}")
                a(f"s_mov_b32 s{rWQ+1}, s{p+1}")
            if kind == "d":
                a(f"s_mov_b32 s{sT0}, {4096*i}")
                a(f"buffer_load_dwordx4 {a4(aDn+4*i)}, v{vT1}, {srd(rWQ)}, s{sT0} offen {KVF}")
            else:
                a(f"s_mov_b32 s{sT0}, {16*3584*i}")
                a(f"buffer_load_dwordx4 {a4(aGU+(32 if kind == 'u' else 0)+4*i)}, v{vT0}, {srd(rWQ)}, s{sT0} offen {FFF}")
            nis[0] += 1
        del fl[:n]
    vecmat(mkAp, 16, lambda i: v4(vR + 4 * i), vO, False, lambda i: a(f"s_waitcnt vmcnt({15 - i + nis[0]})"), lambda i: fissue(1))
    a(f"s_add_u32 s{sT}, s{sT}, 1")
    lab("L_tail")
    a(f"s_mov_b32 s{sFin}, 1")
    stamp(4)
    if NOTAIL:
        stamp(5); stamp(6)
        a("s_branch L_fin")
    lab("L_comb")
    rowred(vLs)
    swapadd(vLs, vT0, 16)
    swapadd(vLs, vT0, 32)
    a(f"s_lshl_b32 s{sT0}, s{sW}, 3")
    a(f"s_add_u32 s{sT0}, s{sT0}, s{sPh}")
    a(f"v_mov_b32 v{vP+3}, s{sT0}")
    a(f"v_add_u32 v{vP+2}, s{sPh}, v{vLo}")
    a(f"v_mov_b32 v{vP}, v{vM}")
    a(f"v_mov_b32 v{vP+1}, v{vLs}")
    a(f"ds_write_b128 v{vP+2}, {v4(vO)} offset:{OP}")
    a(f"ds_write_b64 v{vP+3}, {v2(vP)} offset:{MLS}")
    a(f"v_and_b32 v{vP+4}, 3, v{vL}")
    a(f"v_lshl_add_u32 v{vP+4}, v{vP+4}, 3, s{sPh}")
    a(f"v_and_b32 v{vP+5}, 0x1ff, v{vKo}")
    a(f"v_add_u32 v{vP+5}, s{sPh}, v{vP+5}")
    a("s_waitcnt lgkmcnt(0)")
    a("s_barrier")
    a(f"s_cmp_lg_u32 s{sW}, 0")
    a("s_cbranch_scc1 L_comb_done")
    CB = vX1
    a(f"ds_read_b64 {v2(vP)}, v{vP+4} offset:{MLS}")
    for w in range(4):
        a(f"ds_read_b128 {v4(CB+4*w)}, v{vP+5} offset:{OP+512*w}")
    a(f"s_waitcnt lgkmcnt({0 if STAMP else 4})")
    mx, e, ew, oo = vP + 2, vP + 3, vP + 4, vP + 8
    a(f"v_max_f32_dpp v{mx}, v{vP}, v{vP} quad_perm:[2,3,0,1] {FULL}")
    a("s_nop 1")
    a(f"v_max_f32_dpp v{mx}, v{mx}, v{mx} quad_perm:[1,0,3,2] {FULL}")
    a(f"v_sub_f32 v{ew}, v{vP}, v{mx}")
    a(f"v_mul_f32 v{ew}, {f32(LOG2E)}, v{ew}")
    a(f"v_exp_f32 v{ew}, v{ew}")
    a("s_nop 0")
    a(f"v_mul_f32 v{e}, v{ew}, v{vP+1}")
    a("s_waitcnt lgkmcnt(0)")
    for r in range(4):
        a(f"v_mul_f32_dpp v{oo+r}, v{ew}, v{CB+r} quad_perm:[0,0,0,0] {FULL}")
    a(f"v_add_f32_dpp v{e}, v{e}, v{e} quad_perm:[2,3,0,1] {FULL}")
    for w in range(1, 4):
        for r in range(4):
            a(f"v_fmac_f32_dpp v{oo+r}, v{ew}, v{CB+4*w+r} quad_perm:[{w},{w},{w},{w}] {FULL}")
    a(f"v_add_f32_dpp v{oo+1}, v{e}, v{e} quad_perm:[1,0,3,2] row_mask:0xc bank_mask:0xf")
    a(f"v_mov_b32_dpp v{oo}, v{mx} quad_perm:[0,1,2,3] row_mask:0xc bank_mask:0xf")
    for r in range(4): a(f"v_min_u32 v{oo+r}, -2, v{oo+r}")
    a(f"buffer_store_dwordx4 {v4(oo)}, v{vPa}, {srd(rWS)}, s{sPart} offen sc1")
    lab("L_comb_done")
    a(f"s_cmp_lg_u32 s{sPh}, 0")
    a("s_cbranch_scc1 L_gather")
    a(f"s_movk_i32 s{sPh}, {PHOFF}")
    a(f"s_add_u32 s{sT0}, s2, 256")
    a(f"s_lshl_b32 s{sPart}, s{sT0}, 10")
    a(f"v_mov_b32 v{vM}, {f32(-3.0e38)}")
    a(f"v_mov_b32 v{vLs}, 0")
    for r in range(4): a(f"v_mov_b32 v{vO+r}, 0")
    a(f"s_cmp_eq_u32 s{sFin}, 0")
    a("s_cbranch_scc1 L_vloop")
    a("s_branch L_comb")
    lab("L_gather")
    a(f"s_cmp_ge_u32 s{sP}, {0 if NOFFN else 56}")
    a("s_cbranch_scc1 L_gather2")
    a(f"v_lshl_add_u32 v{vT1}, v{vG}, 10, v{vC16}")
    a(f"s_lshl_b32 s{sT1}, s{sP}, 15")
    a(f"s_lshl_b32 s{sT2}, s{sW}, 8")
    a(f"s_add_u32 s{sT1}, s{sT1}, s{sT2}")
    a(f"v_add_u32 v{vT1}, s{sT1}, v{vT1}")
    assert [k for k, _ in fl] == ["d"] * 8
    fissue(8)
    c("FFN stage 1")
    a(f"s_lshl_b32 s{sT0}, s{sW}, 14")
    a(f"v_add_u32 v{vT0}, s{sT0}, v{vKo}")
    a("s_waitcnt vmcnt(8)")
    for i in range(16):
        a(f"ds_write_b128 v{vT0}, {a4(aGU+4*i)} offset:{GU+1024*i}")
    a(f"v_lshrrev_b32 v{vT0}, 2, v{vC}")
    a(f"v_lshl_add_u32 v{vT0}, v{vG}, 3, v{vT0}")
    a(f"v_lshlrev_b32 v{vT0}, 6, v{vT0}")
    a(f"v_and_b32 v{vT1}, 1, v{vC}")
    a(f"v_lshl_add_u32 v{vT0}, v{vT1}, 3, v{vT0}")
    a(f"v_bfe_u32 v{vIdx}, v{vC}, 1, 1")
    a(f"v_lshl_add_u32 v{vT0}, v{vIdx}, 13, v{vT0}")
    a(f"v_add_u32 v{vT0}, s{sT0}, v{vT0}")
    a(f"v_lshlrev_b32 v{vT1}, 10, v{vT1}")
    a(f"v_lshl_add_u32 v{vT1}, v{vG}, 4, v{vT1}")
    a(f"s_lshl_b32 s{sT0}, s{sW}, 8")
    a(f"v_add_u32 v{vT1}, s{sT0}, v{vT1}")
    a("s_waitcnt lgkmcnt(0)")
    for t in range(4):
        a(f"ds_read_b128 {v4(vP+4*t)}, v{vT1} offset:{XN+64*t}")
    DD = vX1 + 32
    for cg in range(4):
        for t in range(4):
            for hh in range(2):
                a(f"ds_read_b64_tr_b16 {v2(vR+16*cg+4*t+2*hh)}, v{vT0} offset:{GU+2048*t+256*hh+16*cg}")
        a("s_waitcnt lgkmcnt(0)")
        for t in range(4):
            a(f"v_mfma_f32_16x16x32_bf16 {v4(DD+4*cg)}, {v4(vP+4*t)}, {v4(vR+16*cg+4*t)}, {'0' if t == 0 else v4(DD+4*cg)}")
    a(f"s_lshl_b32 s{sT0}, s{sW}, 9")
    a(f"v_lshl_add_u32 v{vT0}, v{vC}, 2, s{sT0}")
    a("s_nop 7")
    for cg in range(4):
        a(f"ds_write_b32 v{vT0}, v{DD+4*cg} offset:{FP+128*cg}")
        a(f"ds_write_b32 v{vT0}, v{DD+4*cg+1} offset:{FP+128*cg+64}")
    a("s_waitcnt lgkmcnt(0)")
    a("s_barrier")
    c("FFN stage 2")
    for w in range(4):
        a(f"ds_read2st64_b32 {v2(vP+2*w)}, v{vL4} offset0:{(FP+512*w)//256} offset1:{(FP+512*w)//256+1}")
    a(f"v_lshrrev_b32 v{vT0}, 3, v{vC}")
    a(f"v_lshlrev_b32 v{vT0}, 6, v{vT0}")
    a(f"v_lshl_add_u32 v{vT0}, v{vG}, 2, v{vT0}")
    a("s_waitcnt lgkmcnt(0)")
    for w in range(1, 4):
        a(f"v_add_f32 v{vP}, v{vP}, v{vP+2*w}")
        a(f"v_add_f32 v{vP+1}, v{vP+1}, v{vP+2*w+1}")
    for j in range(2):
        rnd_bf16(vP + j, vP + j)
        silu(vP + 2 + j, vP + j)
        a(f"v_mul_f32_dpp v{vP+2+j}, v{vP+j}, v{vP+2+j} row_ror:8 {FULL}")
        a(f"v_cvt_pk_bf16_f32 v{vP+2+j}, v{vP+2+j}, v{vP+2+j}")
    for i in range(8):
        cg = i >> 1
        a(f"ds_bpermute_b32 v{vP+4+i}, v{vT0}, v{vP+2+(cg>>1)} offset:{((cg&1)*32+4*(i&1))*4}")
    a("s_waitcnt lgkmcnt(0)")
    a("s_waitcnt vmcnt(0)")
    def mkAh(i, A):
        for r in range(4):
            a(f"v_and_b32 v{A+r}, v{vP+4+i}, v{vMask+r}")
    vecmat(mkAh, 8, lambda i: a4(aDn + 4 * i), DD, True)
    a(f"s_lshl_b32 s{sT0}, s{sP}, 7")
    a("s_nop 6")
    for r in range(4): a(f"v_min_u32 v{DD+r}, -2, v{DD+r}")
    a(f"buffer_store_dwordx4 {v4(DD)}, v{vFo}, {srd(rWS)}, s{sT0} offen sc1")
    lab("L_gather2")
    stamp(5)
    G = vX1 + 16
    def g_loads():
        a(f"buffer_load_dwordx4 {v4(G)}, v{vGp}, {srd(rWS)}, 0 offen sc1")
        a(f"buffer_load_dwordx2 {v2(G+4)}, v{vGm}, {srd(rWS)}, 0 offen offset:512 sc1")
    g_loads()
    poll("L_pg", g_loads, vP, G, 6)
    P8 = ("quad_perm:[1,0,3,2]", "quad_perm:[2,3,0,1]", "row_half_mirror")
    for n, p in enumerate(P8):
        s_ = G + 4 if n == 0 else vP
        a("s_nop 1")
        a(f"v_max_f32_dpp v{vP}, v{s_}, v{s_} {p} {FULL}")
    a(f"v_sub_f32 v{vP}, v{G+4}, v{vP}")
    a(f"v_mul_f32 v{vP}, {f32(LOG2E)}, v{vP}")
    a(f"v_exp_f32 v{vP}, v{vP}")
    a("s_nop 0")
    a(f"v_mul_f32 v{G+4}, v{vP}, v{G+5}")
    for r in range(4): a(f"v_mul_f32 v{G+r}, v{vP}, v{G+r}")
    for p in P8:
        for r in (4, 0, 1, 2, 3):
            a(f"v_add_f32_dpp v{G+r}, v{G+r}, v{G+r} {p} {FULL}")
    a(f"v_rcp_f32 v{G+4}, v{G+4}")
    a("s_nop 0")
    for r in range(4): a(f"v_mul_f32 v{G+r}, v{G+r}, v{G+4}")
    for r in range(4): a(f"v_cvt_pk_bf16_f32 v{G+r}, v{G+r}, v{G+r}")
    def mkAo(i, A):
        for r in range(4):
            a(f"v_and_b32 v{A+r}, v{G+i}, v{vMask+r}")
    vecmat(mkAo, 4, lambda i: a4(aWO + 4 * i), vO, True)
    a(f"s_lshl_b32 s{sT0}, s{sW}, 10")
    a(f"v_add_u32 v{vP}, s{sT0}, v{vKo}")
    a("s_nop 5")
    a(f"ds_write_b128 v{vP}, {v4(vO)} offset:{QP}")
    a("s_waitcnt lgkmcnt(0)")
    a("s_barrier")
    a(f"s_cmp_lg_u32 s{sW}, 0")
    a("s_cbranch_scc1 L_ydone")
    for w in range(1, 4):
        a(f"ds_read_b128 {v4(G+4*w)}, v{vKo} offset:{QP+1024*w}")
    for w in range(1, 4):
        a(f"s_waitcnt lgkmcnt({0 if STAMP else 3-w})")
        for r in range(4): a(f"v_add_f32 v{vO+r}, v{vO+r}, v{G+4*w+r}")
    for r in range(4): a(f"v_min_u32 v{vO+r}, -2, v{vO+r}")
    a(f"buffer_store_dwordx4 {v4(vO)}, v{vYo}, {srd(rWS)}, 0 offen sc1")
    lab("L_ydone")
    stamp(6)
    a(f"s_cmp_eq_u32 s{sCons}, 0")
    a("s_cbranch_scc1 L_fin")
    Y = vF
    a(f"s_mov_b32 s{sT2}, {WS_F - WS_Y}")
    a(f"s_cmp_eq_u32 s{sW}, 3")
    a(f"s_cselect_b32 s{sT1}, {WS_SIZE}, s{sT2}")
    def y_loads():
        for i in range(2):
            a(f"buffer_load_dwordx4 {v4(Y+4*i)}, v{vGy}, {srd(rWS)}, 0 offen offset:{i*1024} sc1")
    def f_loads():
        a(f"buffer_load_dwordx4 {v4(Y+8)}, v{vGy}, {srd(rWS)}, s{sT2} offen sc1")
        a(f"buffer_load_dwordx4 {v4(Y+12)}, v{vGy}, {srd(rWS)}, s{sT1} offen offset:1024 sc1")
    f_loads()
    y_loads()
    a(f"v_lshlrev_b32 v{vT2}, 16, v{vT2}")
    a(f"v_bfe_u32 v{vT0}, v{vL}, 3, 1")
    a(f"v_lshl_add_u32 v{vXo}, v{vT0}, 20, v{vXo}")
    a("s_waitcnt vmcnt(2)")
    if not NOFFN: poll("L_pf", f_loads, vP, Y + 8, 8, first_wait=False)
    for r in range(4): a(f"v_add_f32 v{Y+8+r}, v{Y+8+r}, v{Y+12+r}")
    reduce345(Y + 8)
    a(f"ds_write_b32 v{vCl}, v{Y+8} offset:{CF}")
    poll("L_py", y_loads, vP, Y, 8)
    for r in range(4): a(f"v_add_f32 v{Y+r}, v{Y+r}, v{Y+4+r}")
    reduce345(Y)
    a(f"ds_write_b32 v{vCl}, v{Y} offset:{CY}")
    a("s_waitcnt lgkmcnt(0)")
    a("s_barrier")
    a(f"s_cmp_lg_u32 s{sW}, 0")
    a("s_cbranch_scc1 L_fin")
    Z = vF + 16
    for w in range(4):
        a(f"ds_read_b32 v{Z+w}, v{vCl} offset:{CF+256*w}")
    for w in range(1, 4):
        a(f"ds_read_b32 v{Z+4+w}, v{vCl} offset:{CY+256*w}")
    a(f"s_waitcnt lgkmcnt({0 if STAMP else 3})")
    a(f"v_add_f32 v{Z}, v{Z}, v{Z+1}")
    a(f"v_add_f32 v{Z+2}, v{Z+2}, v{Z+3}")
    a(f"v_add_f32 v{Z}, v{Z}, v{Z+2}")
    rnd_bf16(Z, Z)
    a(f"v_mul_f32 v{Z+1}, {f32(-LOG2E)}, v{Z}")
    a(f"v_exp_f32 v{Z+1}, v{Z+1}")
    a("s_waitcnt lgkmcnt(0)")
    a(f"v_add_f32 v{Y}, v{Y}, v{Z+5}")
    a(f"v_add_f32 v{Z+1}, 1.0, v{Z+1}")
    a(f"v_rcp_f32 v{Z+1}, v{Z+1}")
    a(f"v_add_f32 v{Z+6}, v{Z+6}, v{Z+7}")
    a(f"v_add_f32 v{Y}, v{Y}, v{Z+6}")
    a(f"v_mul_f32 v{Z+1}, v{Z}, v{Z+1}")
    a(f"v_cvt_pk_bf16_f32 v{Y}, v{Y}, v{Z+1}")
    a(f"v_and_b32 v{Z+1}, 0xffff0000, v{Y}")
    a(f"v_lshlrev_b32 v{Y}, 16, v{Y}")
    a(f"v_mul_f32 v{Y}, v{Y}, v{Z+1}")
    rnd_bf16(Y, Y)
    a(f"v_add_f32 v{Y}, v{Y}, v{vT2}")
    a(f"v_cvt_pk_bf16_f32 v{Y}, v{Y}, v{Y}")
    a(f"buffer_store_short v{Y}, v{vXo}, {srd(rOUT)}, 0 offen")
    lab("L_fin")
    if STAMP:
        stamp(7)
        a("s_waitcnt lgkmcnt(0)")
        a(f"s_lshl_b32 s{sT0}, s2, 2")
        a(f"s_add_u32 s{sT0}, s{sT0}, s{sW}")
        a(f"s_lshl_b32 s{sT0}, s{sT0}, 5")
        a(f"s_add_u32 s{sT0}, s{sT0}, {WS_DBG}")
        for k in range(8): a(f"v_mov_b32 v{vP+4+k}, s{sSt+2*k}")
        a(f"v_lshl_or_b32 v{vP+4}, v{vP+4}, 8, s{sT}")
        a(f"buffer_store_dwordx4 {v4(vP+4)}, v{vL23}, {srd(rWS)}, s{sT0} offen")
        a(f"buffer_store_dwordx4 {v4(vP+8)}, v{vL23}, {srd(rWS)}, s{sT0} offen offset:16")
    lab("L_end")
    a("s_endpgm")
    body = "\n".join(o)
    txt = HEADER + f"; @launch grid=(256,1,1) block=(256,1,1) lds={LDS}\n"
    txt += f""".amdgcn_target "amdgcn-amd-amdhsa--gfx950"
.text
.globl {KNAME}
.p2align 8
.type {KNAME},@function
{body}
.section .rodata,"a"
.p2align 6
.amdhsa_kernel {KNAME}
  .amdhsa_next_free_vgpr 400
  .amdhsa_next_free_sgpr 102
  .amdhsa_accum_offset 256
  .amdhsa_group_segment_fixed_size 0
  .amdhsa_kernarg_size 96
  .amdhsa_user_sgpr_count 2
  .amdhsa_user_sgpr_kernarg_segment_ptr 1
  .amdhsa_system_sgpr_workgroup_id_x 1
  .amdhsa_float_denorm_mode_32 3
.end_amdhsa_kernel
"""
    return txt

if __name__ == "__main__":
    out = sys.argv[1]
    opts = eval(sys.argv[2]) if len(sys.argv) > 2 else {}
    open(out, "w").write(gen(opts))
```

```python
import sys, struct

KNAME = "recurrent_scan__mha_block_cached__swiglu_ffn__decode_kernel"
def f32(x): return "0x%08x" % struct.unpack("<I", struct.pack("<f", x))[0]
HEADER = open("recurrent_scan__mha_block_cached__swiglu_ffn__decode.s.ref").read().split("; Override launch geometry")[0]
LOG2E = 1.4426950408889634

def gen(opts):
    o = []
    def a(s): o.append("  " + s)
    def lab(s): o.append(s + ":")
    def c(s): o.append("  ; " + s)
    KVF = opts.get("kvflags", "nt")
    WQF = opts.get("wqflags", "")
    FFF = opts.get("ffnflags", "")
    FSP = opts.get("fsp", 2)
    STAMP = opts.get("stamp", False)
    HS = opts.get("hs", "sc1"); HL = opts.get("hl", "sc1")
    S2 = 0
    NH = opts.get("nh", 8)
    FT = opts.get("ft", -14)
    NX = opts.get("nx", 2)
    MIX = opts.get("mix", "bbq"); NPRE = opts.get("npre", 16); LAG = opts.get("lag", 18); NPOST = opts.get("npost", 12)
    NOFFN = opts.get("noffn", False); NOTAIL = opts.get("notail", False)
    NOQ = opts.get("noq", False); NOSC = opts.get("nosc", False); NOCLR = opts.get("noclr", False)
    NOGU = opts.get("nogu", False); NOFST = opts.get("nofst", False); GUCO = opts.get("guco", False)
    FSTEP = opts.get("fstep", 1); F0 = opts.get("f0", 2)
    TS = opts.get("ts", 18); JB = opts.get("jb", (16, 17, 21)); HM = opts.get("hm", 1)
    assert sorted(list(JB) + [TS, TS + 1, TS + 2]) == list(range(16, 22))
    IB = opts.get("ib", (12, 13, 14, 15))
    def ioff(i): return sum(((i >> j) & 1) << p for j, p in enumerate(IB))
    NK0 = 8 - NX
    NY = opts.get("ny", 2)
    assert NX == 2 and NY in (0, 1, 2)
    NK = NK0 + 8 - NY
    HF = min(5, 4 + S2)
    SV = 8 + S2
    assert 0 <= S2 <= 7
    sX, sKp, sVp, sWQp, sWOp, sWGp, sWUp = 4, 6, 8, 10, 12, 16, 18
    sWDp, sOUTp, sDBGp, sWSp = 20, 22, 24, 26
    rS, rWQ, rWS, rDBG, rOUT = 28, 36, 40, 44, 48
    sBase0, sScB, sFin, sNa, sNb = 32, 33, 34, 35, 59
    sW, sXc, sKk, sH1, sJ1, sBase2, sPart, sPh = 52, 53, 54, 55, 56, 57, 58, 60
    sRot, sFirst2 = 61, 62
    sT, sN0, sN1, sCnt = 63, 64, 65, 66
    sCC, sAA = 68, 70
    sT0, sT1, sT2 = 72, 73, 74
    sP, sCons, sOnes, sTm = 76, 77, 79, 80
    sCid = sKk
    sC4k, sF1, sSpin = 81, 82, 83
    sSt = 84
    def srd(r): return f"s[{r}:{r+3}]"
    def sp(r): return f"s[{r}:{r+1}]"
    vL, vG, vC, vKo, vYo, vL23, vFlo, vM, vLs = 0, 1, 2, 3, 4, 5, 6, 7, 8
    vT0, vT1, vT2 = 9, 10, 11
    vQ, vMask, vA0, vA1, vO = 12, 16, 20, 24, 28
    vP = 32
    vC16, vLo, vIdx, vSa, vFl, vXo, vFo, vL4 = 48, 49, 50, 51, 52, 53, 54, 55
    vQ1 = 56
    vWoA, vPa, vSn, vL2 = 60, 61, 62, 63
    vR, vX1, vX2 = 64, 128, 192
    vF = 192
    aWQ, aWO, aDn, aGU = 0, 64, 0, 80
    def v4(r): return f"v[{r}:{r+3}]"
    def v2(r): return f"v[{r}:{r+1}]"
    def a4(r): return f"a[{r}:{r+3}]"
    XN, FP, QP, CF, CY, OP, MLS = 0, 2048, 4096, 8192, 9216, 10240, 12288
    PHOFF = 2560
    TK, SCL = 15104, 15616
    GU = SCL + 8192
    LDS = GU + 65536
    WS_ST = 0x90000
    WS_PART, WS_CNT, WS_Y, WS_F, WS_DBG, WS_SC = 0, 0x80000, 1 << 20, 2 << 20, 3 << 20, 4 << 20
    WS_SIZE = 8 << 20
    FULL = "row_mask:0xf bank_mask:0xf"
    KVB = 256 << 20

    def rnd_bf16(dst, src):
        a(f"v_cvt_pk_bf16_f32 v{dst}, v{src}, v{src}")
        a(f"v_lshlrev_b32 v{dst}, 16, v{dst}")
    def rowred(v, op="add"):
        for n in (8, 4, 2, 1):
            a("s_nop 1")
            a(f"v_{op}_f32_dpp v{v}, v{v}, v{v} row_ror:{n} {FULL}")
    def swapadd(v, t, which):
        a(f"v_mov_b32 v{t}, v{v}")
        a("s_nop 1")
        a(f"v_permlane{which}_swap_b32 v{t}, v{v}")
        a("s_nop 1")
        a(f"v_add_f32 v{v}, v{v}, v{t}")
    def vecmat(mkA, n, B, acc, first_zero, wait=None, post=None):
        A_ = lambda i: vA0 if i % 2 == 0 else vA1
        mkA(0, A_(0))
        for i in range(n):
            if i < n - 1: mkA(i + 1, A_(i + 1))
            else: a("s_nop 1")
            if wait: wait(i)
            cc = "0" if (first_zero and i == 0) else v4(acc)
            a(f"v_mfma_f32_16x16x32_bf16 {v4(acc)}, {v4(A_(i))}, {B(i)}, {cc}")
            if post: post(i)
    def reduce345(r):
        a("s_nop 1")
        for k in range(4):
            a(f"v_add_f32_dpp v{r+k}, v{r+k}, v{r+k} row_ror:8 {FULL}")
        a("s_nop 1")
        a(f"v_permlane16_swap_b32 v{r}, v{r+1}")
        a(f"v_permlane16_swap_b32 v{r+2}, v{r+3}")
        a("s_nop 1")
        a(f"v_add_f32 v{r}, v{r}, v{r+1}")
        a(f"v_add_f32 v{r+2}, v{r+2}, v{r+3}")
        a("s_nop 1")
        a(f"v_permlane32_swap_b32 v{r}, v{r+2}")
        a("s_nop 1")
        a(f"v_add_f32 v{r}, v{r}, v{r+2}")
    def silu(dst, src):
        a(f"v_mul_f32 v{dst}, {f32(-LOG2E)}, v{src}")
        a(f"v_exp_f32 v{dst}, v{dst}")
        a("s_nop 0")
        a(f"v_add_f32 v{dst}, 1.0, v{dst}")
        a(f"v_rcp_f32 v{dst}, v{dst}")
        a("s_nop 0")
        a(f"v_mul_f32 v{dst}, v{src}, v{dst}")
        rnd_bf16(dst, dst)
    def maxchain(t, r0, n):
        a(f"v_max3_u32 v{t}, v{r0}, v{r0+1}, v{r0+2}")
        r = 3
        while r + 1 < n:
            a(f"v_max3_u32 v{t}, v{r0+r}, v{r0+r+1}, v{t}"); r += 2
        if r < n: a(f"v_max_u32 v{t}, v{r0+r}, v{t}")
    def poll(name, loads, t, r0, n, first_wait=True):
        lab(name)
        if first_wait: a("s_waitcnt vmcnt(0)")
        lab(name + "_chk")
        maxchain(t, r0, n)
        a(f"v_cmp_eq_u32 vcc, -1, v{t}")
        a("s_nop 4")
        a(f"s_cbranch_vccz {name}_done")
        a(f"s_sub_u32 s{sSpin}, s{sSpin}, 1")
        a(f"s_cbranch_scc1 {name}_done")
        a("s_mov_b64 exec, vcc")
        loads()
        a("s_waitcnt vmcnt(0)")
        a(f"s_branch {name}_chk")
        lab(name + "_done")
        a("s_mov_b64 exec, -1")
    NC = opts.get("nc", 1); PSL = opts.get("psl", 4)
    sMk = [68, 70, 34 + 0]
    sMk = [68, 70, 66][:NC]
    def ppoll(name, loads, t, sets, n, nl, first_issued):
        for cx in range(NC):
            a(f"s_mov_b64 {sp(sMk[cx])}, -1")
            if cx == 0 and first_issued: continue
            if cx and PSL: a(f"s_sleep {PSL}")
            loads(sets[cx])
        lab(name)
        for cx in range(NC):
            a(f"s_waitcnt vmcnt({nl*(NC-1)})")
            a(f"s_mov_b64 exec, {sp(sMk[cx])}")
            maxchain(t, sets[cx], n)
            a(f"v_cmp_eq_u32 vcc, -1, v{t}")
            a("s_nop 4")
            a(f"s_cbranch_vccz {name}_ok{cx}")
            a(f"s_mov_b64 {sp(sMk[cx])}, vcc")
            a("s_mov_b64 exec, vcc")
            loads(sets[cx])
            if opts.get("psl2", 0): a(f"s_sleep {opts['psl2']}")
        a(f"s_sub_u32 s{sSpin}, s{sSpin}, 1")
        a(f"s_cbranch_scc0 {name}")
        a(f"s_branch {name}_ok0")
        for cx in range(NC - 1, 0, -1):
            lab(f"{name}_ok{cx}")
            a("s_mov_b64 exec, -1")
            for r in range(n): a(f"v_mov_b32 v{sets[NC]+r}, v{sets[cx]+r}")
            a(f"s_branch {name}_done")
        lab(f"{name}_ok0")
        a("s_mov_b64 exec, -1")
        for r in range(n): a(f"v_mov_b32 v{sets[NC]+r}, v{sets[0]+r}")
        lab(f"{name}_done")
    def jdep(dst, src, tmp):
        for j, p in enumerate(JB):
            d = dst if j == 0 else tmp
            a(f"s_bfe_u32 s{d}, s{src}, {0x10000 + j}")
            a(f"s_lshl_b32 s{d}, s{d}, {p}")
            if j: a(f"s_or_b32 s{dst}, s{dst}, s{tmp}")
    def jext(dst, src, tmp, sh):
        for j, p in enumerate(JB):
            d = dst if j == 0 else tmp
            a(f"s_bfe_u32 s{d}, s{src}, {0x10000 + p}")
            a(f"s_lshl_b32 s{d}, s{d}, {sh + j}")
            if j: a(f"s_or_b32 s{dst}, s{dst}, s{tmp}")
    dl = [0]
    def delay(point):
        for (pt, mod, rem, wv, n) in opts.get("stress", []):
            if pt != point: continue
            dl[0] += 1; L = f"L_dl{dl[0]}"
            a(f"s_and_b32 s100, s2, {mod}")
            a(f"s_cmp_lg_u32 s100, {rem}")
            a(f"s_cbranch_scc1 {L}e")
            if wv is not None:
                a(f"s_cmp_lg_u32 s{sW}, {wv}")
                a(f"s_cbranch_scc1 {L}e")
            a(f"s_mov_b32 s100, {n}")
            lab(L)
            a("s_sleep 127")
            a("s_sub_u32 s100, s100, 1")
            a(f"s_cbranch_scc0 {L}")
            lab(L + "e")
    def stamp(k):
        if STAMP: a(f"s_memrealtime s[{sSt+2*k}:{sSt+2*k+1}]")
    def swapop(v, t, which, op):
        a(f"v_mov_b32 v{t}, v{v}")
        a("s_nop 1")
        a(f"v_permlane{which}_swap_b32 v{t}, v{v}")
        a("s_nop 1")
        a(f"v_{op}_f32 v{v}, v{v}, v{t}")
    def stats(src, m, l):
        for r in range(4):
            a(f"v_lshlrev_b32 v{vP+2*r}, 16, v{src+r}")
            a(f"v_and_b32 v{vP+2*r+1}, 0xffff0000, v{src+r}")
        a(f"v_max3_f32 v{m}, v{vP}, v{vP+1}, v{vP+2}")
        a(f"v_max3_f32 v{m}, v{vP+3}, v{vP+4}, v{m}")
        a(f"v_max3_f32 v{m}, v{vP+5}, v{vP+6}, v{m}")
        a(f"v_max_f32 v{m}, v{vP+7}, v{m}")
        rowred(m, "max")
        swapop(m, vP + 8, 16, "max")
        swapop(m, vP + 8, 32, "max")
        for r in range(8): a(f"v_sub_f32 v{vP+r}, v{vP+r}, v{m}")
        for r in range(8): a(f"v_mul_f32 v{vP+r}, {f32(LOG2E)}, v{vP+r}")
        for r in range(8): a(f"v_exp_f32 v{vP+r}, v{vP+r}")
        for st in (4, 2):
            for r in range(st): a(f"v_add_f32 v{vP+r}, v{vP+r}, v{vP+st+r}")
        a(f"v_add_f32 v{l}, v{vP}, v{vP+1}")
        rowred(l)
        swapop(l, vP + 8, 16, "add")
        swapop(l, vP + 8, 32, "add")
    def kvload(dst, off, base=None):
        if base is None: base = sN0
        if off == 0:
            a(f"buffer_load_dwordx4 {dst}, v{vKo}, {srd(rS)}, s{base} offen {KVF}")
        else:
            a(f"s_add_u32 s{sN1}, s{base}, {off}")
            a(f"buffer_load_dwordx4 {dst}, v{vKo}, {srd(rS)}, s{sN1} offen {KVF}")
    def kdots(ring, i):
        k = ring + 4 * i
        a(f"v_dot2_f32_bf16 v{vP+i}, v{k}, v{vQ}, 0")
        for r in range(1, 4):
            a(f"v_dot2_f32_bf16 v{vP+i}, v{k+r}, v{vQ+r}, v{vP+i}")
    def tree(lds_off):
        for i in range(8):
            a(f"v_add_f32_dpp v{vP+i}, v{vP+i}, v{vP+i} row_ror:8 row_mask:0xf bank_mask:0x3")
        for i in range(8):
            a(f"v_add_f32_dpp v{vP+i}, v{vP+i+8}, v{vP+i+8} row_ror:8 row_mask:0xf bank_mask:0xc")
        for i in range(4):
            a(f"v_add_f32_dpp v{vP+i}, v{vP+i}, v{vP+i} row_shl:4 row_mask:0xf bank_mask:0x5")
        for i in range(4):
            a(f"v_add_f32_dpp v{vP+i}, v{vP+i+4}, v{vP+i+4} row_shr:4 row_mask:0xf bank_mask:0xa")
        a("s_nop 0")
        for i in range(4):
            a(f"v_add_f32_dpp v{vP+i}, v{vP+i}, v{vP+i} quad_perm:[2,3,0,1] {FULL}")
        a(f"v_cndmask_b32 v{vP}, v{vP}, v{vP+2}, {sp(sCC)}")
        a(f"v_cndmask_b32 v{vP+1}, v{vP+1}, v{vP+3}, {sp(sCC)}")
        a("s_nop 0")
        a(f"v_add_f32_dpp v{vP}, v{vP}, v{vP} quad_perm:[1,0,3,2] {FULL}")
        a(f"v_add_f32_dpp v{vP+1}, v{vP+1}, v{vP+1} quad_perm:[1,0,3,2] {FULL}")
        a(f"v_cndmask_b32 v{vP}, v{vP}, v{vP+1}, {sp(sAA)}")
        rnd_bf16(vP, vP)
        a(f"v_mul_f32 v{vP}, {f32(128 ** -0.5)}, v{vP}")
        a(f"v_cvt_pk_bf16_f32 v{vP}, v{vP}, v{vP}")
        a(f"ds_write_b16 v{vSa}, v{vP} offset:{lds_off}")

    lab(KNAME)
    a("s_cmp_ge_u32 s2, 256")
    a("s_cbranch_scc1 L_end")
    a("s_load_dwordx16 s[4:19], s[0:1], 0")
    a("s_load_dwordx8 s[20:27], s[0:1], 64")
    stamp(0)
    a(f"v_lshrrev_b32 v{vT0}, 6, v0")
    a(f"v_lshlrev_b32 v{vFlo}, 8, v0")
    a(f"v_and_b32 v{vL}, 63, v0")
    a(f"v_readfirstlane_b32 s{sW}, v{vT0}")
    a(f"v_lshrrev_b32 v{vG}, 4, v{vL}")
    a(f"v_and_b32 v{vC}, 15, v{vL}")
    a(f"s_and_b32 s{sXc}, s2, 7")
    a(f"s_lshr_b32 s{sKk}, s2, 3")
    if HM == 1:
        a(f"s_and_b32 s{sH1}, s2, 31")
    else:
        a(f"s_lshl_b32 s{sH1}, s{sXc}, 2")
        a(f"s_and_b32 s{sT0}, s{sKk}, 3")
        a(f"s_or_b32 s{sH1}, s{sH1}, s{sT0}")
    a(f"s_lshr_b32 s{sJ1}, s2, 5")
    vxo, vxp, vxa, vwq = vP + 10, vP + 11, vM, vSn
    a(f"v_lshlrev_b32 v{vxo}, 5, v{vL}")
    a(f"v_lshrrev_b32 v{vT0}, 5, v{vL}")
    a(f"v_and_b32 v{vT1}, 31, v{vL}")
    a(f"v_lshlrev_b32 v{vT1}, 3, v{vT1}")
    a(f"v_lshl_add_u32 v{vxp}, v{vT0}, 10, v{vT1}")
    a(f"s_lshl_b32 s{sT0}, s{sW}, 8")
    a(f"v_add_u32 v{vxp}, s{sT0}, v{vxp}")
    a(f"v_lshlrev_b32 v{vC16}, 4, v{vC}")
    a(f"v_lshl_add_u32 v{vwq}, v{vG}, 18, v{vC16}")
    a(f"s_lshl_b32 s{sT0}, s{sW}, 20")
    a(f"s_lshl_b32 s{sT1}, s{sH1}, 8")
    a(f"s_add_u32 s{sT0}, s{sT0}, s{sT1}")
    a(f"v_add_u32 v{vwq}, s{sT0}, v{vwq}")
    a(f"v_lshlrev_b32 v{vKo}, 4, v{vL}")
    jdep(sN0, sJ1, sT0)
    a(f"s_lshl_b32 s{sT0}, s{sW}, 10")
    a(f"s_add_u32 s{sN0}, s{sN0}, s{sT0}")
    a(f"s_lshl_b32 s{sT0}, s{sH1}, 22")
    a(f"s_add_u32 s{sN0}, s{sN0}, s{sT0}")
    a(f"s_mov_b32 s{sBase0}, s{sN0}")
    a(f"s_add_u32 s{sN0}, s{sN0}, {128 << 20}")
    a(f"s_and_b32 s{sRot}, s{sJ1}, 3")
    a(f"s_lshl_b32 s{sRot}, s{sRot}, 16")
    for r, n in ((rWQ, 4 << 20), (rS, KVB)):
        a(f"s_mov_b32 s{r+2}, {n}")
        a(f"s_mov_b32 s{r+3}, 0x20000")
    a("s_waitcnt lgkmcnt(0)")
    a(f"global_load_dwordx4 {v4(vP)}, v{vxo}, {sp(sX)}")
    a(f"global_load_dwordx4 {v4(vP+4)}, v{vxo}, {sp(sX)} offset:16")
    a(f"global_load_dwordx2 {v2(vP+8)}, v{vxp}, {sp(sX)}")
    for r, p in ((rS, sKp), (rWQ, sWQp)):
        a(f"s_mov_b32 s{r}, s{p}")
        a(f"s_mov_b32 s{r+1}, s{p+1}")
    def wqload(i):
        a(f"s_add_u32 s{sT0}, s{sRot}, {i*8192}")
        a(f"s_and_b32 s{sT0}, s{sT0}, 0x3ffff")
        if NOQ: a(f"s_mov_b32 s{sT0}, 0x7000000")
        a(f"buffer_load_dwordx4 {a4(aWQ+4*(i%16))}, v{vwq}, {srd(rWQ)}, s{sT0} offen {WQF}")
    Gt, Ut, Dn, FB = vF, vF + 8, vF + 16, vF + 24
    vSel = [vQ, vQ + 1, vQ + 2, vQ + 3, vQ1, vQ1 + 1, vQ1 + 2, vQ1 + 3]
    vXn = vP
    XR = [vX1, vX2][:NX]
    bulk = [(f"y{j}", i) for j in range(2 - NY, 2) for i in range(16)] + [(f"x{j}", i) for j in range(NX) for i in range(16)] + [("k", i) for i in range(16)]
    FASTPRO = opts.get("fastpro", False)
    seq = []; qi = 32 if FASTPRO else 0; bi = 0; p = 0
    while qi < 32:
        if MIX[p % len(MIX)] == "q" or bi >= len(bulk): seq.append(("q", qi)); qi += 1
        else: seq.append(bulk[bi]); bi += 1
        p += 1
    nq_end = len(seq)
    seq += bulk[bi:]
    assert sum(k == "q" for k, _ in seq[:NPRE]) <= 16
    issued = []
    def issue1(op):
        kind, i = op
        if kind == "q": wqload(i)
        elif kind == "k": kvload(v4(vR + 4 * i), ioff(i))
        elif kind[0] == "y":
            j = int(kind[1]); kvload(a4(64 + 64 * j + 4 * i), ((NK0 + j) << TS) + ioff(i), sBase0)
        else:
            j = int(kind[1]); kvload(v4(XR[j] + 4 * i), ((NK0 + j) << TS) + ioff(i))
        issued.append(op)
    def younger(op): return min(63, len(issued) - 1 - issued.index(op))
    for op in seq[:NPRE]: issue1(op)
    for r, p, n in ((rWS, sWSp, WS_SIZE), (rDBG, sDBGp, 256), (rOUT, sOUTp, 2048)):
        a(f"s_mov_b32 s{r}, s{p}")
        a(f"s_mov_b32 s{r+1}, s{p+1}")
        a(f"s_mov_b32 s{r+2}, {n}")
        a(f"s_mov_b32 s{r+3}, 0x20000")
    a(f"s_mov_b32 s{sCC}, 0xcccccccc"); a(f"s_mov_b32 s{sCC+1}, 0xcccccccc")
    a(f"s_mov_b32 s{sAA}, 0xaaaaaaaa"); a(f"s_mov_b32 s{sAA+1}, 0xaaaaaaaa")
    a(f"s_mov_b32 s{sOnes}, 0x3f803f80")
    a(f"s_mov_b32 s{sSpin}, 0x80000")
    a(f"s_movk_i32 s{sC4k}, 4096")
    a(f"s_mov_b32 s{sPh}, 0")
    TFL = NK0 + 1
    a(f"s_and_b32 s{sT0}, s{sKk}, 7")
    a(f"s_cmp_eq_u32 s{sT0}, s{sXc}")
    a(f"s_cselect_b32 s{sCons}, 1, 0")
    a(f"s_mov_b32 s{sP}, 99")
    a(f"s_add_u32 s{sBase2}, s{sKk}, 32")
    a(f"s_lshl_b32 s{sBase2}, s{sBase2}, 22")
    a(f"s_lshl_b32 s{sT0}, s{sW}, 10")
    a(f"s_add_u32 s{sBase2}, s{sBase2}, s{sT0}")
    a(f"s_lshl_b32 s{sScB}, s{sKk}, 15")
    a(f"s_add_u32 s{sScB}, s{sScB}, s{sT0}")
    a(f"s_add_u32 s{sScB}, s{sScB}, {WS_SC}")
    jdep(sFirst2, sXc, sT0)
    a(f"s_add_u32 s{sFirst2}, s{sFirst2}, s{sBase2}")
    a(f"s_lshl_b32 s{sCnt}, s{sKk}, 8")
    a(f"s_add_u32 s{sCnt}, s{sCnt}, {WS_CNT}")
    a(f"s_lshl_b32 s{sT0}, s{sH1}, 3")
    a(f"s_add_u32 s{sT0}, s{sT0}, s{sJ1}")
    a(f"s_lshl_b32 s{sPart}, s{sT0}, 10")
    a(f"v_lshlrev_b32 v{vL23}, 23, v{vL}")
    a(f"v_lshlrev_b32 v{vL4}, 2, v{vL}")
    a(f"v_lshlrev_b32 v{vL2}, 1, v{vL}")
    a(f"s_lshl_b32 s{sT0}, s{sW}, 11")
    a(f"v_add_u32 v{vSa}, s{sT0}, v{vL2}")
    a(f"v_add_u32 v{vFlo}, s2, v{vFlo}")
    a(f"v_add_u32 v{vT0}, 31, v{vL}")
    a(f"v_lshrrev_b32 v{vT0}, 6, v{vT0}")
    a(f"v_lshl_add_u32 v{vPa}, v{vT0}, 23, v{vKo}")
    a(f"v_and_b32 v{vT0}, 1, v{vG}")
    a(f"v_lshlrev_b32 v{vT0}, 4, v{vT0}")
    a(f"v_lshl_add_u32 v{vLo}, v{vC}, 5, v{vT0}")
    a(f"v_lshl_add_u32 v{vWoA}, v{vG}, 12, v{vC16}")
    a(f"s_lshr_b32 s{sT0}, s2, 2")
    a(f"s_lshl_b32 s{sT0}, s{sT0}, 16")
    a(f"s_lshl_b32 s{sT1}, s{sW}, 14")
    a(f"s_add_u32 s{sT0}, s{sT0}, s{sT1}")
    a(f"s_and_b32 s{sT1}, s2, 3")
    a(f"s_lshl_b32 s{sT1}, s{sT1}, 8")
    a(f"s_add_u32 s{sT0}, s{sT0}, s{sT1}")
    a(f"v_add_u32 v{vWoA}, s{sT0}, v{vWoA}")
    a(f"v_lshrrev_b32 v{vT0}, 1, v{vG}")
    a(f"v_lshlrev_b32 v{vT0}, 4, v{vT0}")
    a(f"v_lshrrev_b32 v{vT1}, 2, v{vC}")
    a(f"v_add_u32 v{vT0}, v{vT0}, v{vT1}")
    a(f"v_and_b32 v{vT1}, 0x7f, v{vLo}")
    a(f"v_lshl_add_u32 v{vYo}, v{vT0}, 13, v{vT1}")
    a(f"s_and_b32 s{sT0}, s2, 3")
    a(f"s_lshl_b32 s{sT0}, s{sT0}, 15")
    a(f"s_lshr_b32 s{sT1}, s2, 2")
    a(f"s_lshl_b32 s{sT1}, s{sT1}, 7")
    a(f"s_add_u32 s{sT0}, s{sT0}, s{sT1}")
    a(f"s_add_u32 s{sT0}, s{sT0}, {WS_Y}")
    a(f"v_add_u32 v{vYo}, s{sT0}, v{vYo}")
    a(f"s_lshl_b32 s{sT0}, s{sW}, 2")
    a(f"v_add_u32 v{vT0}, s{sT0}, v{vT0}")
    a(f"v_lshl_add_u32 v{vFo}, v{vT0}, 13, v{vT1}")
    a(f"v_add_u32 v{vFo}, {WS_F}, v{vFo}")
    a(f"v_and_b32 v{vXo}, 7, v{vL}")
    a(f"v_lshl_add_u32 v{vXo}, v{vXo}, 2, v{vG}")
    a(f"s_lshl_b32 s{sT0}, s{sCid}, 6")
    a(f"v_lshl_add_u32 v{vXo}, v{vXo}, 1, s{sT0}")
    a(f"v_and_b32 v{vT0}, 1, v{vC}")
    a(f"v_lshlrev_b32 v{vT0}, 4, v{vT0}")
    a(f"v_mov_b32 v{vT1}, 0xffff")
    a(f"v_lshlrev_b32 v{vT0}, v{vT0}, v{vT1}")
    a(f"v_bfe_u32 v{vT1}, v{vC}, 1, 2")
    for r in range(4):
        a(f"v_cmp_eq_u32 vcc, {r}, v{vT1}")
        a("s_nop 1")
        a(f"v_cndmask_b32 v{vMask+r}, 0, v{vT0}, vcc")
    a(f"v_mov_b32 v{vT0}, 0x0c0c0c0c")
    a(f"s_mov_b32 s{sT0}, 0x01000100")
    a(f"s_mov_b32 s{sT1}, 0x03020302")
    for r in range(4):
        a(f"v_bfi_b32 v{vSel[r]}, v{vMask+r}, s{sT0}, v{vT0}")
        a(f"v_bfi_b32 v{vSel[4+r]}, v{vMask+r}, s{sT1}, v{vT0}")
    a(f"v_lshrrev_b32 v{vxa}, 3, v{vC}")
    a(f"v_lshlrev_b32 v{vxa}, 10, v{vxa}")
    a(f"v_lshl_add_u32 v{vxa}, v{vG}, 6, v{vxa}")
    a(f"s_lshl_b32 s{sT0}, s{sW}, 8")
    a(f"v_add_u32 v{vxa}, s{sT0}, v{vxa}")
    a(f"v_mov_b32 v{vT1}, -1")
    a(f"ds_write_b32 v{vL4}, v{vT1} offset:{TK}")
    a(f"ds_write_b32 v{vL4}, v{vT1} offset:{TK+256}")
    a(f"s_mov_b32 s{sFin}, 0")
    delay("start")
    c("LayerNorm")
    a(f"s_waitcnt vmcnt({NPRE})")
    stamp(1)
    vs, vmn, vacc0, vacc1, vt, vu = vA0, vA0 + 1, vA0 + 2, vA0 + 3, vA1, vA1 + 1
    a(f"v_dot2_f32_bf16 v{vs}, v{vP}, s{sOnes}, 0")
    for r in range(1, 8):
        a(f"v_dot2_f32_bf16 v{vs}, v{vP+r}, s{sOnes}, v{vs}")
    a("s_nop 1")
    rowred(vs)
    swapadd(vs, vt, 16)
    a(f"v_mul_f32 v{vmn}, {f32(1/512)}, v{vs}")
    a(f"v_mov_b32 v{vacc0}, 0")
    a(f"v_mov_b32 v{vacc1}, 0")
    for r in range(8):
        a(f"v_lshlrev_b32 v{vt}, 16, v{vP+r}")
        a(f"v_and_b32 v{vu}, 0xffff0000, v{vP+r}")
        a(f"v_sub_f32 v{vt}, v{vt}, v{vmn}")
        a(f"v_sub_f32 v{vu}, v{vu}, v{vmn}")
        a(f"v_fmac_f32 v{vacc0}, v{vt}, v{vt}")
        a(f"v_fmac_f32 v{vacc1}, v{vu}, v{vu}")
    a(f"v_add_f32 v{vs}, v{vacc0}, v{vacc1}")
    rowred(vs)
    swapadd(vs, vt, 16)
    a(f"v_mul_f32 v{vs}, {f32(1/512)}, v{vs}")
    rnd_bf16(vs, vs)
    a(f"v_add_f32 v{vs}, {f32(1e-5)}, v{vs}")
    rnd_bf16(vs, vs)
    a(f"v_sqrt_f32 v{vs}, v{vs}")
    rnd_bf16(vmn, vmn)
    rnd_bf16(vs, vs)
    a(f"v_rcp_f32 v{vs}, v{vs}")
    for r in (8, 9):
        a(f"v_lshlrev_b32 v{vt}, 16, v{vP+r}")
        a(f"v_and_b32 v{vu}, 0xffff0000, v{vP+r}")
        a(f"v_sub_f32 v{vt}, v{vt}, v{vmn}")
        a(f"v_sub_f32 v{vu}, v{vu}, v{vmn}")
        a(f"v_cvt_pk_bf16_f32 v{vu}, v{vt}, v{vu}")
        a(f"v_lshlrev_b32 v{vt}, 16, v{vu}")
        a(f"v_and_b32 v{vu}, 0xffff0000, v{vu}")
        a(f"v_mul_f32 v{vt}, v{vt}, v{vs}")
        a(f"v_mul_f32 v{vu}, v{vu}, v{vs}")
        a(f"v_cvt_pk_bf16_f32 v{vP+r}, v{vt}, v{vu}")
    a(f"ds_write_b64 v{vxp}, {v2(vP+8)} offset:{XN}")
    a("s_waitcnt lgkmcnt(0)")
    for t in range(4):
        a(f"s_lshr_b32 s{sT0}, s{sRot}, 12")
        a(f"s_add_u32 s{sT0}, s{sT0}, {16*t}")
        a(f"s_and_b32 s{sT0}, s{sT0}, 63")
        a(f"v_add_u32 v{vt}, s{sT0}, v{vxa}")
        a(f"ds_read_b128 {v4(vXn+4*t)}, v{vt} offset:{XN}")
    c("q projection interleaved with the load stream")
    qdone = [32 if FASTPRO else 0]
    def qstep():
        j = qdone[0]
        A = vA0 if j % 2 == 0 else vA1
        if j == 0: a("s_waitcnt lgkmcnt(0)")
        for r in range(4):
            a(f"v_perm_b32 v{A+r}, v{vXn+j//2}, v{vXn+j//2}, v{vSel[4*(j%2)+r]}")
        a(f"s_waitcnt vmcnt({younger(('q', j))})")
        a("s_nop 0")
        a(f"v_mfma_f32_16x16x32_bf16 {v4(vO)}, {v4(A)}, {a4(aWQ+4*(j%16))}, {'0' if j == 0 else v4(vO)}")
        qdone[0] += 1
    stop = max(NPRE, min(len(seq), nq_end + NPOST))
    for op in seq[NPRE:stop]:
        if op[0] == "q":
            while qdone[0] <= op[1] - 16: qstep()
        issue1(op)
        while qdone[0] < 32 and ("q", qdone[0]) in issued and younger(("q", qdone[0])) >= LAG: qstep()
    while qdone[0] < 32: qstep()
    a(f"v_lshrrev_b32 v{vT0}, 1, v{vG}")
    a(f"v_lshl_add_u32 v{vT0}, v{vT0}, 9, v{vLo}")
    a(f"s_lshl_b32 s{sT0}, s{sW}, 10")
    a(f"v_add_u32 v{vT0}, s{sT0}, v{vT0}")
    a(f"v_mov_b32 v{vM}, {f32(-3.0e38)}")
    a(f"v_mov_b32 v{vLs}, 0")
    a(f"s_mov_b32 s{sT}, 0")
    a(f"s_lshl_b32 s{sT0}, s{sW}, 9")
    a(f"v_add_u32 v{vLo}, s{sT0}, v{vLo}")
    a(f"v_lshlrev_b32 v{vT1}, 3, v{vL}")
    a(f"ds_write_b128 v{vT0}, {v4(vO)} offset:{QP}")
    a("s_waitcnt lgkmcnt(0)")
    a("s_barrier")
    def qfetch(dst, off):
        for w in range(4):
            a(f"ds_read_b64 {v2(vP+2*w)}, v{vT1} offset:{QP+1024*w+off}")
        a("s_waitcnt lgkmcnt(0)")
        for w in range(1, 4):
            a(f"v_add_f32 v{vP}, v{vP}, v{vP+2*w}")
            a(f"v_add_f32 v{vP+1}, v{vP+1}, v{vP+2*w+1}")
        a(f"v_cvt_pk_bf16_f32 v{vP}, v{vP}, v{vP+1}")
        for r in range(4):
            a(f"ds_bpermute_b32 v{dst+r}, v{vC16}, v{vP} offset:{4*r}")
    qfetch(vQ, 512)
    stamp(2)
    for op in seq[stop:]: issue1(op)
    assert [op for op in issued if op[0] == "k"] == [("k", i) for i in range(16)]
    for r in range(4): a(f"v_mov_b32 v{vO+r}, 0")
    a(f"s_add_u32 s{sN0}, s{sN0}, {1 << TS}")
    a("s_waitcnt lgkmcnt(0)")
    c("K loop")
    a(".p2align 6")
    lab("L_kloop")
    for i in range(16):
        a("s_waitcnt vmcnt(15)")
        kdots(vR, i)
        kvload(v4(vR + 4 * i), ioff(i))
    tree(SCL)
    a(f"v_add_u32 v{vSa}, 128, v{vSa}")
    a(f"s_add_u32 s{sT}, s{sT}, 1")
    a(f"s_add_u32 s{sN0}, s{sN0}, {1 << TS}")
    hooks = [(1, "L_h1"), (2, "L_x1"), (TFL, "L_h2")] + ([(TFL + 1, "L_x1")] if NY else []) + [ (NK0 - 1, "L_hb1"), (NK0, "L_hq1"), (NK - 1, "L_hv"), (NK, "L_kend")]
    assert len(set(t for t, _ in hooks)) == len(hooks)
    for t, l in hooks:
        a(f"s_cmp_eq_u32 s{sT}, {t}")
        a(f"s_cbranch_scc1 {l}")
    a("s_branch L_kloop")
    lab("L_h1")
    c("clears first, then the extra K tiles")
    for r in range(4): a(f"v_mov_b32 v{vA0+r}, -1")
    a(f"s_cmp_eq_u32 s{sCons}, 0")
    a("s_cbranch_scc1 L_h1a")
    a(f"s_lshl_b32 s{sT0}, s{sCid}, 13")
    a(f"s_lshl_b32 s{sT1}, s{sW}, 11")
    a(f"s_add_u32 s{sT0}, s{sT0}, s{sT1}")
    a(f"s_add_u32 s{sT0}, s{sT0}, {WS_F}")
    a(f"buffer_store_dwordx4 {v4(vA0)}, v{vKo}, {srd(rWS)}, s{sT0} offen sc1")
    a(f"buffer_store_dwordx4 {v4(vA0)}, v{vKo}, {srd(rWS)}, s{sT0} offen offset:1024 sc1")
    lab("L_h1a")
    a(f"s_cmp_lg_u32 s{sW}, 0")
    a("s_cbranch_scc1 L_h1b")
    a(f"buffer_store_dwordx4 {v4(vA0)}, v{vYo}, {srd(rWS)}, 0 offen sc1")
    a(f"buffer_store_dwordx4 {v4(vA0)}, v{vPa}, {srd(rWS)}, s{sPart} offen sc1")
    a(f"s_add_u32 s{sT0}, s2, 256")
    a(f"s_lshl_b32 s{sT0}, s{sT0}, 10")
    a(f"buffer_store_dwordx4 {v4(vA0)}, v{vPa}, {srd(rWS)}, s{sT0} offen sc1")
    a(f"s_cmp_lg_u32 s{sXc}, 0")
    a("s_cbranch_scc1 L_h1b")
    a(f"v_mov_b32 v{vT0}, 0")
    a(f"buffer_store_dword v{vT0}, v{vL23}, {srd(rWS)}, s{sCnt} offen sc1")
    lab("L_h1b")
    for j in range(NX):
        lab(f"L_x{j}")
        for i in range(16): kdots(XR[j], i)
        tree(SCL + (NK0 - 1) * 128)
        if j >= 2 - NY:
            a(f"s_cmp_gt_u32 s{sT}, 2")
            a("s_cbranch_scc1 L_kloop")
            for r in range(64): a(f"v_accvgpr_read_b32 v{XR[j]+r}, a{64+64*j+r}")
        a("s_branch L_kloop")
    lab("L_h2")
    a("s_barrier")
    a(f"v_mov_b32 v{vT0}, 1")
    a(f"buffer_store_byte v{vT0}, v{vFlo}, {srd(rDBG)}, 0 offen sc1")
    a(f"s_branch {'L_x0' if NY == 2 else 'L_kloop'}")
    lab("L_hb1")
    if opts.get("wtlb", False):
        a(f"s_load_dword s100, {sp(sVp)}, s{sBase0}")
        a(f"s_load_dword s101, {sp(sVp)}, s{sBase2}")
        a(f"s_add_u32 s{sT0}, s{sBase2}, {1 << 21}")
        a(f"s_load_dword s100, {sp(sVp)}, s{sT0}")
        a(f"s_lshl_b32 s{sT0}, s2, 14")
        a(f"s_load_dword s101, {sp(sWOp)}, s{sT0}")
        a(f"s_load_dword s100, {sp(sWGp)}, 0")
        a(f"s_load_dword s101, {sp(sWUp)}, 0")
        a(f"s_load_dword s100, {sp(sWDp)}, 0")
    a(f"s_mov_b32 s{sN0}, s{sBase0}")
    a("s_branch L_kloop")
    lab("L_hq1")
    a(f"v_lshlrev_b32 v{vT1}, 3, v{vL}")
    qfetch(vQ, 0)
    a(f"v_add_u32 v{vSa}, {128*NX}, v{vSa}")
    a(f"s_lshl_b32 s{sT0}, s{sW}, 11")
    a(f"v_add_u32 v{vT0}, s{sT0}, v{vKo}")
    a(f"ds_read_b128 {v4(vA1)}, v{vT0} offset:{SCL}")
    a(f"s_lshl_b32 s{sT0}, s{sPart}, 2")
    a(f"s_lshl_b32 s{sT1}, s{sW}, 10")
    a(f"s_add_u32 s{sT0}, s{sT0}, s{sT1}")
    a(f"s_add_u32 s{sT0}, s{sT0}, {WS_SC}")
    a("s_waitcnt lgkmcnt(0)")
    a(f"buffer_store_dwordx4 {v4(vA1)}, v{vKo}, {srd(rWS)}, s{sT0} offen sc1")
    stats(vA1, vA0, vA0 + 1)
    a(f"s_sub_u32 s{sT0}, s{sT0}, {WS_SC}")
    a(f"s_lshr_b32 s{sT0}, s{sT0}, 7")
    a(f"s_add_u32 s{sT0}, s{sT0}, {WS_ST}")
    a(f"buffer_store_dwordx2 {v2(vA0)}, v{vL23}, {srd(rWS)}, s{sT0} offen sc1")
    a("s_branch L_kloop")
    lab("L_hv")
    a(f"s_mov_b32 s{rS}, s{sVp}")
    a(f"s_mov_b32 s{rS+1}, s{sVp+1}")
    a(f"s_mov_b32 s{sN0}, s{sBase0}")
    a("s_branch L_kloop")
    lab("L_kend")
    delay("kend")
    stamp(3)
    a(f"v_and_b32 v{vL2}, 0x7c, v{vL2}")
    a(f"s_lshl_b32 s{sT0}, s{sW}, 11")
    a(f"v_add_u32 v{vSa}, s{sT0}, v{vL2}")
    a(f"ds_read_b32 v{vSn}, v{vSa} offset:{SCL+1024}")
    a(f"v_add_u32 v{vT0}, s{sT0}, v{vKo}")
    a(f"ds_read_b128 {v4(vA1)}, v{vT0} offset:{SCL+1024}")
    vSh = vQ
    a(f"v_and_b32 v{vSh}, 1, v{vL}")
    a(f"v_lshlrev_b32 v{vSh}, 4, v{vSh}")
    a(f"s_mov_b32 s{sT}, 0")
    vGp, vGm, vGy = vQ1, vQ1 + 1, vQ1 + 2
    a(f"v_lshrrev_b32 v{vT0}, 3, v{vC}")
    a(f"v_and_b32 v{vT1}, 7, v{vC}")
    a(f"v_lshl_add_u32 v{vT0}, v{vT0}, 8, v{vT1}")
    a(f"s_lshl_b32 s{sT0}, s{sKk}, 3")
    a(f"v_add_u32 v{vT0}, s{sT0}, v{vT0}")
    a(f"v_lshlrev_b32 v{vGm}, 10, v{vT0}")
    a(f"v_lshl_add_u32 v{vGp}, v{vG}, 4, v{vGm}")
    a(f"s_lshr_b32 s{sT0}, s{sXc}, 2")
    a(f"s_lshl_b32 s{sT0}, s{sT0}, 8")
    a(f"s_lshl_b32 s{sT1}, s{sW}, 6")
    a(f"s_add_u32 s{sT0}, s{sT0}, s{sT1}")
    a(f"v_add_u32 v{vGp}, s{sT0}, v{vGp}")
    a(f"s_lshl_b32 s{sT0}, s{sCid}, 13")
    a(f"s_lshl_b32 s{sT1}, s{sW}, 11")
    a(f"s_add_u32 s{sT0}, s{sT0}, s{sT1}")
    a(f"s_add_u32 s{sT0}, s{sT0}, {WS_Y}")
    a(f"v_add_u32 v{vGy}, s{sT0}, v{vKo}")
    vCl = vQ + 1
    a(f"s_lshl_b32 s{sT0}, s{sW}, 8")
    a(f"v_add_u32 v{vCl}, s{sT0}, v{vL4}")
    vSc, vSt = vQ1 + 3, vQ + 2
    a(f"v_mov_b32 v{vSc}, 1.0")
    a(f"s_mov_b32 s{sNa}, s{sN0}")
    a(f"s_mov_b32 s{sNb}, s{sN0}")
    a("s_waitcnt lgkmcnt(0)")
    stats(vA1, vM, vLs)
    c("V loop: vSn = scores (u16) of the block in flight, sN0 = next block")
    a(".p2align 6")
    lab("L_vloop")
    vS, tm, al, pp = vP, vP + 1, vP + 2, vP + 3
    a(f"v_lshrrev_b32 v{vS}, v{vSh}, v{vSn}")
    a(f"v_lshlrev_b32 v{vS}, 16, v{vS}")
    a(f"v_sub_f32 v{pp}, v{vS}, v{vM}")
    a(f"v_mul_f32 v{pp}, {f32(LOG2E)}, v{pp}")
    a(f"v_exp_f32 v{pp}, v{pp}")
    a(f"s_cmp_ge_u32 s{sT}, 7")
    a("s_cbranch_scc1 L_sg")
    a(f"v_add_u32 v{vSa}, 128, v{vSa}")
    a(f"ds_read_b32 v{vSn}, v{vSa} offset:{SCL+1024}")
    a("s_branch L_sreq")
    lab("L_sg")
    a(f"s_cmp_ge_u32 s{sN0}, {KVB}")
    a("s_cbranch_scc1 L_vlast")
    jext(sT0, sN0, sT1, 12)
    a(f"s_bfe_u32 s{sT1}, s{sN0}, {0x30000 + TS}")
    a(f"s_lshl_b32 s{sT1}, s{sT1}, 7")
    a(f"s_add_u32 s{sT0}, s{sT0}, s{sT1}")
    a(f"s_add_u32 s{sT0}, s{sT0}, s{sScB}")
    if not NOSC: a(f"buffer_load_dword v{vSn}, v{vL2}, {srd(rWS)}, s{sT0} offen sc1")
    lab("L_sreq")
    a(f"s_cmp_lt_u32 s{sT}, {SV-2}")
    a("s_cbranch_scc1 L_sdone")
    a(f"s_cmp_lg_u32 s{sW}, 0")
    a("s_cbranch_scc1 L_sdone")
    a(f"v_mov_b32 v{vIdx}, 1")
    a(f"buffer_atomic_add v{vIdx}, v{vL23}, {srd(rWS)}, s{sCnt} offen sc0 sc1")
    lab("L_sdone")
    def softmax():
        a(f"v_mul_f32 v{pp}, v{pp}, v{vSc}")
        a(f"v_cvt_pk_bf16_f32 v{pp}, v{pp}, v{pp}")
        a("s_nop 1")
    softmax()
    def mkAp(i, A):
        for r in range(4):
            a(f"v_and_b32_dpp v{A+r}, v{pp}, v{vMask+r} row_newbcast:{i} {FULL}")
    vecmat(mkAp, 16, lambda i: v4(vR + 4 * i), vO, False, lambda i: a("s_waitcnt vmcnt(15)"), lambda i: kvload(v4(vR + 4 * i), ioff(i), sNa if i < 8 else sNb))
    a(f"s_add_u32 s{sT}, s{sT}, 1")
    a("s_waitcnt lgkmcnt(0)")
    a(f"s_cmp_ge_u32 s{sT}, {SV-1}")
    a("s_cbranch_scc1 L_dyn")
    a(f"s_add_u32 s{sNa}, s{sNa}, {1 << TS}")
    a(f"s_mov_b32 s{sNb}, s{sNa}")
    lab("L_vhooks")
    a(f"s_cmp_gt_u32 s{sT}, 8")
    a("s_cbranch_scc1 L_vloop")
    for t, l in ((8, "L_comb"), (HF, "L_hfl"), (HF + 1, "L_hck"), (HF + 2, "L_hst")):
        a(f"s_cmp_eq_u32 s{sT}, {t}")
        a(f"s_cbranch_scc1 {l}")
    a("s_branch L_vloop")
    lab("L_dyn")
    a(f"s_lshl_b32 s{sT1}, s{sT}, 2")
    a(f"v_mov_b32 v{vT0}, s{sT1}")
    a(f"s_cmp_lg_u32 s{sW}, 0")
    a("s_cbranch_scc1 L_fol")
    a(f"v_readfirstlane_b32 s{sT0}, v{vIdx}")
    a("s_nop 3")
    a(f"s_min_u32 s{sT0}, s{sT0}, 0xffff")
    a(f"v_mov_b32 v{vIdx}, s{sT0}")
    a(f"ds_write_b32 v{vT0}, v{vIdx} offset:{TK}")
    a("s_branch L_got")
    lab("L_fol")
    a(f"ds_read_b32 v{vIdx}, v{vT0} offset:{TK}")
    a("s_waitcnt lgkmcnt(0)")
    a(f"v_readfirstlane_b32 s{sT0}, v{vIdx}")
    a("s_nop 3")
    a(f"s_cmp_eq_u32 s{sT0}, -1")
    a("s_cbranch_scc1 L_fol")
    lab("L_got")
    POOL = 64; NF = POOL - NH; A_ = opts.get("fa", 52)
    a(f"s_sub_u32 s{sT1}, s{sT0}, {A_}")
    a(f"s_min_u32 s{sT1}, s{sT1}, 3")
    a(f"s_lshl_b32 s{sP}, s{sT1}, 5")
    a(f"s_add_u32 s{sP}, s{sP}, s{sKk}")
    a(f"s_cmp_lt_u32 s{sKk}, 24")
    a(f"s_cselect_b32 s{sT1}, 2, 1")
    a(f"s_cmp_ge_u32 s{sT0}, {A_}")
    a(f"s_cselect_b32 s{sT1}, s{sT1}, 0")
    a(f"s_sub_u32 s{sT0}, s{sT0}, s{sT1}")
    a(f"s_cmp_lt_u32 s{sP}, 56")
    a(f"s_cselect_b32 s{sT0}, 0xffff, s{sT0}")
    a(f"s_sub_u32 s{sT1}, s{sT0}, {NF}")
    a(f"s_lshr_b32 s{sT2}, s{sT1}, 1")
    a(f"s_add_u32 s{sT2}, s{sT2}, {NF}")
    a(f"s_and_b32 s{sTm}, s{sT1}, 1")
    a(f"s_cmp_ge_u32 s{sT0}, {NF}")
    a(f"s_cselect_b32 s{sT0}, s{sT2}, s{sT0}")
    a(f"s_cselect_b32 s{sTm}, s{sTm}, 2")
    jdep(sT1, sT0, sT2)
    a(f"s_lshr_b32 s{sT2}, s{sT0}, 3")
    a(f"s_lshl_b32 s{sT2}, s{sT2}, {TS}")
    a(f"s_add_u32 s{sT1}, s{sT1}, s{sT2}")
    a(f"s_add_u32 s{sT1}, s{sT1}, s{sBase2}")
    a(f"s_cmp_ge_u32 s{sT0}, {POOL}")
    a(f"s_cselect_b32 s{sN0}, {KVB}, s{sT1}")
    a(f"s_cmp_eq_u32 s{sTm}, 1")
    a(f"s_cselect_b32 s{sNa}, {KVB}, s{sN0}")
    a(f"s_cmp_eq_u32 s{sTm}, 0")
    a(f"s_cselect_b32 s{sNb}, {KVB}, s{sN0}")
    a("s_branch L_vhooks")
    lab("L_hfl")
    delay("v4")
    a(f"buffer_load_dword v{vFl}, v{vL4}, {srd(rDBG)}, 0 offen sc1")
    a("s_branch L_vloop")
    lab("L_hck")
    a(f"v_cmp_ne_u32 vcc, 0x01010101, v{vFl}")
    a("s_nop 4")
    a("s_cbranch_vccz L_hok")
    a(f"s_sub_u32 s{sSpin}, s{sSpin}, 1")
    a("s_cbranch_scc1 L_hok")
    a("s_sleep 4")
    a(f"buffer_load_dword v{vFl}, v{vL4}, {srd(rDBG)}, 0 offen sc1")
    a("s_waitcnt vmcnt(0)")
    a("s_branch L_hck")
    lab("L_hok")
    a(f"v_and_b32 v{vT0}, 31, v{vL}")
    a(f"v_lshlrev_b32 v{vT0}, 3, v{vT0}")
    a(f"s_lshl_b32 s{sT0}, s{sKk}, 8")
    a(f"s_add_u32 s{sT0}, s{sT0}, {WS_ST}")
    a(f"buffer_load_dwordx2 {v2(vSt)}, v{vT0}, {srd(rWS)}, s{sT0} offen sc1")
    a(f"s_cmp_eq_u32 s{sCons}, 0")
    a("s_cbranch_scc1 L_vloop")
    a(f"global_load_ushort v{vT2}, v{vXo}, {sp(sX)}")
    if opts.get("wout", False):
        a(f"buffer_load_ushort v{vT1}, v{vXo}, {srd(rOUT)}, 0 offen")
    a("s_branch L_vloop")
    lab("L_hst")
    a(f"v_mov_b32 v{vP}, v{vSt}")
    rowred(vP, "max")
    swapop(vP, vP + 1, 16, "max")
    a(f"v_sub_f32 v{vSt}, v{vSt}, v{vP}")
    a(f"v_mul_f32 v{vSt}, {f32(LOG2E)}, v{vSt}")
    a(f"v_exp_f32 v{vSt}, v{vSt}")
    a("s_nop 0")
    a(f"v_mul_f32 v{vSt+1}, v{vSt}, v{vSt+1}")
    a(f"v_mov_b32 v{vSt}, v{vP}")
    rowred(vSt + 1)
    swapop(vSt + 1, vP + 1, 16, "add")
    a(f"v_rcp_f32 v{vSt+1}, v{vSt+1}")
    a("s_branch L_vloop")
    lab("L_vlast")
    delay("vlast")
    G = vX1 + 16
    a(f"buffer_load_dwordx2 {v2(G+4)}, v{vGm}, {srd(rWS)}, 0 offen offset:512 sc1")
    for i in range(4): a(f"global_load_dwordx4 {a4(aWO+4*i)}, v{vWoA}, {sp(sWOp)} offset:{1024*i} {KVF}")
    a(f"s_cmp_lt_u32 s{sP}, {0 if NOFFN else 56}")
    a(f"s_cselect_b32 s{rWQ+2}, 1835008, 0")
    a(f"v_lshrrev_b32 v{vT0}, 2, v{vL}")
    a(f"s_movk_i32 s{sT1}, 3584")
    a(f"v_mul_u32_u24 v{vT0}, s{sT1}, v{vT0}")
    a(f"v_and_b32 v{vT1}, 0x30, v{vKo}")
    a(f"s_mul_i32 s{sT1}, s{sW}, {128*3584}")
    a(f"s_lshl_b32 s{sT2}, s{sP}, 6")
    a(f"s_add_u32 s{sT1}, s{sT1}, s{sT2}")
    a(f"v_add3_u32 v{vT0}, v{vT0}, v{vT1}, s{sT1}")
    softmax()
    fl = [("g", i) for i in range(8)] + [("u", i) for i in range(8)] + [("d", i) for i in range(8)]
    nis = [5]
    def fissue(n):
        for kind, i in fl[:n]:
            if i == 0:
                p = {"g": sWGp, "u": sWUp, "d": sWDp}[kind]
                a(f"s_mov_b32 s{rWQ}, s{p}")
                a(f"s_mov_b32 s{rWQ+1}, s{p+1}")
            if kind == "d":
                a(f"s_mov_b32 s{sT0}, {4096*i}")
                a(f"buffer_load_dwordx4 {a4(aDn+4*i)}, v{vT1}, {srd(rWQ)}, s{sT0} offen {KVF}")
            else:
                a(f"s_mov_b32 s{sT0}, {16*3584*i}")
                a(f"buffer_load_dwordx4 {a4(aGU+(32 if kind == 'u' else 0)+4*i)}, v{vT0}, {srd(rWQ)}, s{sT0} offen {FFF}")
            nis[0] += 1
        del fl[:n]
    vecmat(mkAp, 16, lambda i: v4(vR + 4 * i), vO, False, lambda i: a(f"s_waitcnt vmcnt({15 - i + nis[0]})"), lambda i: fissue(1))
    a(f"s_add_u32 s{sT}, s{sT}, 1")
    lab("L_tail")
    a(f"s_mov_b32 s{sFin}, 1")
    stamp(4)
    if NOTAIL:
        stamp(5); stamp(6)
        a("s_branch L_fin")
    a(f"s_cmp_lg_u32 s{sPh}, 0")
    a("s_cbranch_scc1 L_comb1")
    lab("L_comb")
    a(f"s_lshl_b32 s{sT0}, s{sW}, 3")
    a(f"s_add_u32 s{sT0}, s{sT0}, s{sPh}")
    a(f"v_mov_b32 v{vP+3}, s{sT0}")
    a(f"v_add_u32 v{vP+2}, s{sPh}, v{vLo}")
    a(f"v_mov_b32 v{vP}, v{vM}")
    a(f"v_mov_b32 v{vP+1}, v{vLs}")
    a(f"ds_write_b128 v{vP+2}, {v4(vO)} offset:{OP}")
    a(f"ds_write_b64 v{vP+3}, {v2(vP)} offset:{MLS}")
    a(f"v_and_b32 v{vP+4}, 3, v{vL}")
    a(f"v_lshl_add_u32 v{vP+4}, v{vP+4}, 3, s{sPh}")
    a(f"v_and_b32 v{vP+5}, 0x1ff, v{vKo}")
    a(f"v_add_u32 v{vP+5}, s{sPh}, v{vP+5}")
    a("s_waitcnt lgkmcnt(0)")
    a("s_barrier")
    a(f"s_cmp_lg_u32 s{sW}, 0")
    a("s_cbranch_scc1 L_comb_done")
    CB = vX1
    a(f"ds_read_b64 {v2(vP)}, v{vP+4} offset:{MLS}")
    for w in range(4):
        a(f"ds_read_b128 {v4(CB+4*w)}, v{vP+5} offset:{OP+512*w}")
    a(f"s_waitcnt lgkmcnt({0 if STAMP else 4})")
    mx, e, ew, oo = vP + 2, vP + 3, vP + 4, vP + 8
    a(f"v_max_f32_dpp v{mx}, v{vP}, v{vP} quad_perm:[2,3,0,1] {FULL}")
    a("s_nop 1")
    a(f"v_max_f32_dpp v{mx}, v{mx}, v{mx} quad_perm:[1,0,3,2] {FULL}")
    a(f"v_sub_f32 v{ew}, v{vP}, v{mx}")
    a(f"v_mul_f32 v{ew}, {f32(LOG2E)}, v{ew}")
    a(f"v_exp_f32 v{ew}, v{ew}")
    a("s_nop 0")
    a(f"v_mul_f32 v{e}, v{ew}, v{vP+1}")
    a("s_waitcnt lgkmcnt(0)")
    for r in range(4):
        a(f"v_mul_f32_dpp v{oo+r}, v{ew}, v{CB+r} quad_perm:[0,0,0,0] {FULL}")
    a(f"v_add_f32_dpp v{e}, v{e}, v{e} quad_perm:[2,3,0,1] {FULL}")
    for w in range(1, 4):
        for r in range(4):
            a(f"v_fmac_f32_dpp v{oo+r}, v{ew}, v{CB+4*w+r} quad_perm:[{w},{w},{w},{w}] {FULL}")
    a(f"v_add_f32_dpp v{oo+1}, v{e}, v{e} quad_perm:[1,0,3,2] row_mask:0xc bank_mask:0xf")
    a(f"v_mov_b32_dpp v{oo}, v{mx} quad_perm:[0,1,2,3] row_mask:0xc bank_mask:0xf")
    for r in range(4): a(f"v_min_u32 v{oo+r}, -2, v{oo+r}")
    a(f"buffer_store_dwordx4 {v4(oo)}, v{vPa}, {srd(rWS)}, s{sPart} offen sc1")
    lab("L_comb_done")
    a(f"s_movk_i32 s{sPh}, {PHOFF}")
    a(f"s_add_u32 s{sT0}, s2, 256")
    a(f"s_lshl_b32 s{sPart}, s{sT0}, 10")
    a(f"v_mov_b32 v{vM}, v{vSt}")
    a(f"v_mov_b32 v{vSc}, v{vSt+1}")
    for r in range(4): a(f"v_mov_b32 v{vO+r}, 0")
    a(f"v_and_b32 v{vPa}, 0x1ff, v{vLo}")
    a(f"v_lshrrev_b32 v{vLs}, 1, v{vG}")
    a(f"v_lshl_add_u32 v{vPa}, v{vLs}, 23, v{vPa}")
    a(f"s_cmp_eq_u32 s{sFin}, 0")
    a("s_cbranch_scc1 L_vloop")
    lab("L_comb1")
    a("s_nop 3")
    a(f"ds_write_b128 v{vLo}, {v4(vO)} offset:{OP+PHOFF}")
    a("s_waitcnt lgkmcnt(0)")
    a("s_barrier")
    a(f"s_cmp_lg_u32 s{sW}, 0")
    a("s_cbranch_scc1 L_gather")
    for w in range(1, 4):
        a(f"ds_read_b128 {v4(CB+4*w)}, v{vLo} offset:{OP+PHOFF+512*w}")
    for w in range(1, 4):
        a(f"s_waitcnt lgkmcnt({0 if STAMP else 3-w})")
        for r in range(4): a(f"v_add_f32 v{vO+r}, v{vO+r}, v{CB+4*w+r}")
    for r in range(4): a(f"v_min_u32 v{CB+r}, -2, v{vO+r}")
    a(f"buffer_store_dwordx4 {v4(CB)}, v{vPa}, {srd(rWS)}, s{sPart} offen {HS}")
    lab("L_gather")
    a(f"s_cmp_ge_u32 s{sP}, {0 if NOFFN else 56}")
    a("s_cbranch_scc1 L_gather2")
    a(f"v_lshl_add_u32 v{vT1}, v{vG}, 10, v{vC16}")
    a(f"s_lshl_b32 s{sT1}, s{sP}, 15")
    a(f"s_lshl_b32 s{sT2}, s{sW}, 8")
    a(f"s_add_u32 s{sT1}, s{sT1}, s{sT2}")
    a(f"v_add_u32 v{vT1}, s{sT1}, v{vT1}")
    assert [k for k, _ in fl] == ["d"] * 8
    fissue(8)
    c("FFN stage 1")
    a(f"s_lshl_b32 s{sT0}, s{sW}, 14")
    a(f"v_add_u32 v{vT0}, s{sT0}, v{vKo}")
    a("s_waitcnt vmcnt(8)")
    for i in range(16):
        a(f"ds_write_b128 v{vT0}, {a4(aGU+4*i)} offset:{GU+1024*i}")
    a(f"v_lshrrev_b32 v{vT0}, 2, v{vC}")
    a(f"v_lshl_add_u32 v{vT0}, v{vG}, 3, v{vT0}")
    a(f"v_lshlrev_b32 v{vT0}, 6, v{vT0}")
    a(f"v_and_b32 v{vT1}, 1, v{vC}")
    a(f"v_lshl_add_u32 v{vT0}, v{vT1}, 3, v{vT0}")
    a(f"v_bfe_u32 v{vIdx}, v{vC}, 1, 1")
    a(f"v_lshl_add_u32 v{vT0}, v{vIdx}, 13, v{vT0}")
    a(f"v_add_u32 v{vT0}, s{sT0}, v{vT0}")
    a(f"v_lshlrev_b32 v{vT1}, 10, v{vT1}")
    a(f"v_lshl_add_u32 v{vT1}, v{vG}, 4, v{vT1}")
    a(f"s_lshl_b32 s{sT0}, s{sW}, 8")
    a(f"v_add_u32 v{vT1}, s{sT0}, v{vT1}")
    a("s_waitcnt lgkmcnt(0)")
    for t in range(4):
        a(f"ds_read_b128 {v4(vP+4*t)}, v{vT1} offset:{XN+64*t}")
    DD = vX1 + 32
    for cg in range(4):
        for t in range(4):
            for hh in range(2):
                a(f"ds_read_b64_tr_b16 {v2(vR+16*cg+4*t+2*hh)}, v{vT0} offset:{GU+2048*t+256*hh+16*cg}")
        a("s_waitcnt lgkmcnt(0)")
        for t in range(4):
            a(f"v_mfma_f32_16x16x32_bf16 {v4(DD+4*cg)}, {v4(vP+4*t)}, {v4(vR+16*cg+4*t)}, {'0' if t == 0 else v4(DD+4*cg)}")
    a(f"s_lshl_b32 s{sT0}, s{sW}, 9")
    a(f"v_lshl_add_u32 v{vT0}, v{vC}, 2, s{sT0}")
    a("s_nop 7")
    for cg in range(4):
        a(f"ds_write_b32 v{vT0}, v{DD+4*cg} offset:{FP+128*cg}")
        a(f"ds_write_b32 v{vT0}, v{DD+4*cg+1} offset:{FP+128*cg+64}")
    a("s_waitcnt lgkmcnt(0)")
    a("s_barrier")
    c("FFN stage 2")
    for w in range(4):
        a(f"ds_read2st64_b32 {v2(vP+2*w)}, v{vL4} offset0:{(FP+512*w)//256} offset1:{(FP+512*w)//256+1}")
    a(f"v_lshrrev_b32 v{vT0}, 3, v{vC}")
    a(f"v_lshlrev_b32 v{vT0}, 6, v{vT0}")
    a(f"v_lshl_add_u32 v{vT0}, v{vG}, 2, v{vT0}")
    a("s_waitcnt lgkmcnt(0)")
    for w in range(1, 4):
        a(f"v_add_f32 v{vP}, v{vP}, v{vP+2*w}")
        a(f"v_add_f32 v{vP+1}, v{vP+1}, v{vP+2*w+1}")
    for j in range(2):
        rnd_bf16(vP + j, vP + j)
        silu(vP + 2 + j, vP + j)
        a(f"v_mul_f32_dpp v{vP+2+j}, v{vP+j}, v{vP+2+j} row_ror:8 {FULL}")
        a(f"v_cvt_pk_bf16_f32 v{vP+2+j}, v{vP+2+j}, v{vP+2+j}")
    for i in range(8):
        cg = i >> 1
        a(f"ds_bpermute_b32 v{vP+4+i}, v{vT0}, v{vP+2+(cg>>1)} offset:{((cg&1)*32+4*(i&1))*4}")
    a("s_waitcnt lgkmcnt(0)")
    a("s_waitcnt vmcnt(0)")
    def mkAh(i, A):
        for r in range(4):
            a(f"v_and_b32 v{A+r}, v{vP+4+i}, v{vMask+r}")
    vecmat(mkAh, 8, lambda i: a4(aDn + 4 * i), DD, True)
    a(f"s_lshl_b32 s{sT0}, s{sP}, 7")
    a("s_nop 6")
    for r in range(4): a(f"v_min_u32 v{DD+r}, -2, v{DD+r}")
    a(f"buffer_store_dwordx4 {v4(DD)}, v{vFo}, {srd(rWS)}, s{sT0} offen sc1")
    lab("L_gather2")
    delay("gather")
    stamp(5)
    GS = [vR + 4 * j for j in range(NC)] + [G]
    def g_loads(B=None):
        if B is None: B = GS[0] if NC > 1 else G
        a(f"buffer_load_dwordx4 {v4(B)}, v{vGp}, {srd(rWS)}, 0 offen {HL}")
    def m_loads():
        a(f"buffer_load_dwordx2 {v2(G+4)}, v{vGm}, {srd(rWS)}, 0 offen offset:512 sc1")
    g_loads()
    a("s_waitcnt vmcnt(1)")
    a(f"v_mov_b32 v{G+6}, 0")
    a("s_mov_b32 exec_lo, 0x00ff00ff")
    a("s_mov_b32 exec_hi, 0x00ff00ff")
    poll("L_pm", m_loads, vP, G + 4, 3, first_wait=False)
    P8 = ("quad_perm:[1,0,3,2]", "quad_perm:[2,3,0,1]", "row_half_mirror")
    wt = G + 6
    for n, p in enumerate(P8):
        s_ = G + 4 if n == 0 else wt
        a("s_nop 1")
        a(f"v_max_f32_dpp v{wt}, v{s_}, v{s_} {p} {FULL}")
    a(f"v_sub_f32 v{wt}, v{G+4}, v{wt}")
    a(f"v_mul_f32 v{wt}, {f32(LOG2E)}, v{wt}")
    a(f"v_exp_f32 v{wt}, v{wt}")
    a("s_nop 0")
    a(f"v_mul_f32 v{G+4}, v{wt}, v{G+5}")
    for p in P8:
        a("s_nop 1")
        a(f"v_add_f32_dpp v{G+4}, v{G+4}, v{G+4} {p} {FULL}")
    a(f"v_rcp_f32 v{G+4}, v{G+4}")
    a(f"v_mov_b32 v{G+5}, 1.0")
    a(f"v_mul_f32 v{wt}, v{wt}, v{G+4}")
    a("s_nop 0")
    a(f"v_mov_b32_dpp v{wt}, v{G+5} quad_perm:[0,1,2,3] row_mask:0xf bank_mask:0xc")
    if NC > 1: ppoll("L_pg", g_loads, vP, GS, 4, 1, True)
    else: poll("L_pg", g_loads, vP, G, 4)
    if opts.get("tstamp"): stamp(1)
    for r in range(4): a(f"v_mul_f32 v{G+r}, v{wt}, v{G+r}")
    for p in P8:
        for r in range(4):
            a(f"v_add_f32_dpp v{G+r}, v{G+r}, v{G+r} {p} {FULL}")
    for r in range(4): a(f"v_cvt_pk_bf16_f32 v{G+r}, v{G+r}, v{G+r}")
    def mkAo(i, A):
        for r in range(4):
            a(f"v_and_b32 v{A+r}, v{G+i}, v{vMask+r}")
    vecmat(mkAo, 4, lambda i: a4(aWO + 4 * i), vO, True)
    a(f"s_lshl_b32 s{sT0}, s{sW}, 10")
    a(f"v_add_u32 v{vP}, s{sT0}, v{vKo}")
    a("s_nop 5")
    a(f"ds_write_b128 v{vP}, {v4(vO)} offset:{QP}")
    if opts.get("tstamp"): stamp(2)
    a("s_waitcnt lgkmcnt(0)")
    a("s_barrier")
    a(f"s_cmp_lg_u32 s{sW}, 0")
    a("s_cbranch_scc1 L_ydone")
    for w in range(1, 4):
        a(f"ds_read_b128 {v4(G+4*w)}, v{vKo} offset:{QP+1024*w}")
    for w in range(1, 4):
        a(f"s_waitcnt lgkmcnt({0 if STAMP else 3-w})")
        for r in range(4): a(f"v_add_f32 v{vO+r}, v{vO+r}, v{G+4*w+r}")
    for r in range(4): a(f"v_min_u32 v{vO+r}, -2, v{vO+r}")
    a(f"buffer_store_dwordx4 {v4(vO)}, v{vYo}, {srd(rWS)}, 0 offen {HS}")
    lab("L_ydone")
    stamp(6)
    a(f"s_cmp_eq_u32 s{sCons}, 0")
    a("s_cbranch_scc1 L_fin")
    Y = vF
    a(f"s_mov_b32 s{sT2}, {WS_F - WS_Y}")
    a(f"s_cmp_eq_u32 s{sW}, 3")
    a(f"s_cselect_b32 s{sT1}, {WS_SIZE}, s{sT2}")
    YS = [vR + 32 + 8 * j for j in range(NC)] + [Y]
    def y_loads(B=None):
        if B is None: B = YS[0] if NC > 1 else Y
        for i in range(2):
            a(f"buffer_load_dwordx4 {v4(B+4*i)}, v{vGy}, {srd(rWS)}, 0 offen offset:{i*1024} {HL}")
    def f_loads():
        a(f"buffer_load_dwordx4 {v4(Y+8)}, v{vGy}, {srd(rWS)}, s{sT2} offen sc1")
        a(f"buffer_load_dwordx4 {v4(Y+12)}, v{vGy}, {srd(rWS)}, s{sT1} offen offset:1024 sc1")
    f_loads()
    y_loads()
    a(f"v_lshlrev_b32 v{vT2}, 16, v{vT2}")
    a(f"v_bfe_u32 v{vT0}, v{vL}, 3, 1")
    a(f"v_lshl_add_u32 v{vXo}, v{vT0}, 20, v{vXo}")
    a("s_waitcnt vmcnt(2)")
    if not NOFFN: poll("L_pf", f_loads, vP, Y + 8, 8, first_wait=False)
    for r in range(4): a(f"v_add_f32 v{Y+8+r}, v{Y+8+r}, v{Y+12+r}")
    reduce345(Y + 8)
    a(f"ds_write_b32 v{vCl}, v{Y+8} offset:{CF}")
    if NC > 1: ppoll("L_py", y_loads, vP, YS, 8, 2, True)
    else: poll("L_py", y_loads, vP, Y, 8)
    if opts.get("tstamp"): stamp(3)
    for r in range(4): a(f"v_add_f32 v{Y+r}, v{Y+r}, v{Y+4+r}")
    reduce345(Y)
    a(f"ds_write_b32 v{vCl}, v{Y} offset:{CY}")
    a("s_waitcnt lgkmcnt(0)")
    a("s_barrier")
    a(f"s_cmp_lg_u32 s{sW}, 0")
    a("s_cbranch_scc1 L_fin")
    Z = vF + 16
    for w in range(4):
        a(f"ds_read_b32 v{Z+w}, v{vCl} offset:{CF+256*w}")
    for w in range(1, 4):
        a(f"ds_read_b32 v{Z+4+w}, v{vCl} offset:{CY+256*w}")
    a(f"s_waitcnt lgkmcnt({0 if STAMP else 3})")
    a(f"v_add_f32 v{Z}, v{Z}, v{Z+1}")
    a(f"v_add_f32 v{Z+2}, v{Z+2}, v{Z+3}")
    a(f"v_add_f32 v{Z}, v{Z}, v{Z+2}")
    rnd_bf16(Z, Z)
    a(f"v_mul_f32 v{Z+1}, {f32(-LOG2E)}, v{Z}")
    a(f"v_exp_f32 v{Z+1}, v{Z+1}")
    a("s_waitcnt lgkmcnt(0)")
    a(f"v_add_f32 v{Y}, v{Y}, v{Z+5}")
    a(f"v_add_f32 v{Z+1}, 1.0, v{Z+1}")
    a(f"v_rcp_f32 v{Z+1}, v{Z+1}")
    a(f"v_add_f32 v{Z+6}, v{Z+6}, v{Z+7}")
    a(f"v_add_f32 v{Y}, v{Y}, v{Z+6}")
    a(f"v_mul_f32 v{Z+1}, v{Z}, v{Z+1}")
    a(f"v_cvt_pk_bf16_f32 v{Y}, v{Y}, v{Z+1}")
    a(f"v_and_b32 v{Z+1}, 0xffff0000, v{Y}")
    a(f"v_lshlrev_b32 v{Y}, 16, v{Y}")
    a(f"v_mul_f32 v{Y}, v{Y}, v{Z+1}")
    rnd_bf16(Y, Y)
    a(f"v_add_f32 v{Y}, v{Y}, v{vT2}")
    a(f"v_cvt_pk_bf16_f32 v{Y}, v{Y}, v{Y}")
    a(f"buffer_store_short v{Y}, v{vXo}, {srd(rOUT)}, 0 offen")
    lab("L_fin")
    if STAMP:
        stamp(7)
        a("s_waitcnt lgkmcnt(0)")
        a(f"s_lshl_b32 s{sT0}, s2, 2")
        a(f"s_add_u32 s{sT0}, s{sT0}, s{sW}")
        a(f"s_lshl_b32 s{sT0}, s{sT0}, 5")
        a(f"s_add_u32 s{sT0}, s{sT0}, {WS_DBG}")
        for k in range(8): a(f"v_mov_b32 v{vP+4+k}, s{sSt+2*k}")
        a(f"v_lshl_or_b32 v{vP+4}, v{vP+4}, 8, s{sT}")
        a(f"buffer_store_dwordx4 {v4(vP+4)}, v{vL23}, {srd(rWS)}, s{sT0} offen")
        a(f"buffer_store_dwordx4 {v4(vP+8)}, v{vL23}, {srd(rWS)}, s{sT0} offen offset:16")
    lab("L_end")
    a("s_endpgm")
    body = "\n".join(o)
    txt = HEADER + f"; @launch grid=(256,1,1) block=(256,1,1) lds={LDS}\n"
    txt += f""".amdgcn_target "amdgcn-amd-amdhsa--gfx950"
.text
.globl {KNAME}
.p2align 8
.type {KNAME},@function
{body}
.section .rodata,"a"
.p2align 6
.amdhsa_kernel {KNAME}
  .amdhsa_next_free_vgpr 448
  .amdhsa_next_free_sgpr 102
  .amdhsa_accum_offset 256
  .amdhsa_group_segment_fixed_size 0
  .amdhsa_kernarg_size 96
  .amdhsa_user_sgpr_count 2
  .amdhsa_user_sgpr_kernarg_segment_ptr 1
  .amdhsa_system_sgpr_workgroup_id_x 1
  .amdhsa_float_denorm_mode_32 3
.end_amdhsa_kernel
"""
    return txt

if __name__ == "__main__":
    out = sys.argv[1]
    opts = eval(sys.argv[2]) if len(sys.argv) > 2 else {}
    open(out, "w").write(gen(opts))
```

```python
import sys, struct

KNAME = "recurrent_scan__mha_block_cached__swiglu_ffn__decode_kernel"
def f32(x): return "0x%08x" % struct.unpack("<I", struct.pack("<f", x))[0]
HEADER = open("recurrent_scan__mha_block_cached__swiglu_ffn__decode.s.ref").read().split("; Override launch geometry")[0]
LOG2E = 1.4426950408889634

def gen(opts):
    o = []
    def a(s): o.append("  " + s)
    def lab(s): o.append(s + ":")
    def c(s): o.append("  ; " + s)
    KVF = opts.get("kvflags", "nt")
    WQF = opts.get("wqflags", "")
    FFF = opts.get("ffnflags", "")
    FSP = opts.get("fsp", 2)
    STAMP = opts.get("stamp", False)
    CS = opts.get("cs", "sc1")
    HS = opts.get("hs", "sc1"); HL = opts.get("hl", "sc1")
    S2 = opts.get("S2", 0)
    NH = opts.get("nh", 8)
    FT = opts.get("ft", -14)
    NX = opts.get("nx", 2)
    MIX = opts.get("mix", "bbq"); NPRE = opts.get("npre", 16); LAG = opts.get("lag", 18); NPOST = opts.get("npost", 12)
    NOFFN = opts.get("noffn", False); NOTAIL = opts.get("notail", False)
    NOQ = opts.get("noq", False); NOSC = opts.get("nosc", False); NOCLR = opts.get("noclr", False)
    NOGU = opts.get("nogu", False); NOFST = opts.get("nofst", False); GUCO = opts.get("guco", False)
    FSTEP = opts.get("fstep", 1); F0 = opts.get("f0", 2)
    TS = opts.get("ts", 18); JB = opts.get("jb", (16, 17, 21)); HM = opts.get("hm", 1)
    assert sorted(list(JB) + [TS, TS + 1, TS + 2]) == list(range(16, 22))
    IB = opts.get("ib", (12, 13, 14, 15))
    def ioff(i): return sum(((i >> j) & 1) << p for j, p in enumerate(IB))
    NK0 = 8 - NX
    NY = opts.get("ny", 2)
    assert NX == 2 and NY in (0, 2)
    NK = NK0 + 8 - NY
    HF = 4
    SV = 8 + S2
    assert 0 <= S2 <= 7
    sX, sKp, sVp, sWQp, sWOp, sWGp, sWUp = 4, 6, 8, 10, 12, 16, 18
    sWDp, sOUTp, sDBGp, sWSp = 20, 22, 24, 26
    rS, rWQ, rWS, rDBG, rOUT = 28, 36, 40, 44, 48
    sBase0, sScB, sFin, sNa, sNb = 32, 33, 34, 35, 59
    sW, sXc, sKk, sH1, sJ1, sBase2, sPart, sPh = 52, 53, 54, 55, 56, 57, 58, 60
    sRot, sFirst2 = 61, 62
    sT, sN0, sN1, sCnt = 63, 64, 65, 66
    sCC, sAA = 68, 70
    sT0, sT1, sT2 = 72, 73, 74
    sP, sCons, sOnes, sTm = 76, 77, 79, 80
    sCid = sKk
    sC4k, sF1, sSpin = 81, 82, 83
    sSt = 84
    def srd(r): return f"s[{r}:{r+3}]"
    def sp(r): return f"s[{r}:{r+1}]"
    vL, vG, vC, vKo, vYo, vL23, vFlo, vM, vLs = 0, 1, 2, 3, 4, 5, 6, 7, 8
    vT0, vT1, vT2 = 9, 10, 11
    vQ, vMask, vA0, vA1, vO = 12, 16, 20, 24, 28
    vP = 32
    vC16, vLo, vIdx, vSa, vFl, vXo, vFo, vL4 = 48, 49, 50, 51, 52, 53, 54, 55
    vQ1 = 56
    vWoA, vPa, vSn, vL2 = 60, 61, 62, 63
    vR, vX1, vX2 = 64, 128, 192
    vF = 192
    aWQ, aWO, aDn, aGU = 0, 64, 0, 80
    def v4(r): return f"v[{r}:{r+3}]"
    def v2(r): return f"v[{r}:{r+1}]"
    def a4(r): return f"a[{r}:{r+3}]"
    XN, FP, QP, CF, CY, OP, MLS = 0, 2048, 4096, 8192, 9216, 10240, 12288
    PHOFF = 2560
    TK, SCL = 15104, 15616
    GU = SCL + 8192
    LDS = GU + 65536
    WS_ST = 0x90000
    WS_PART, WS_CNT, WS_Y, WS_F, WS_DBG, WS_SC = 0, 0x80000, 1 << 20, 2 << 20, 3 << 20, 4 << 20
    WS_SIZE = 8 << 20
    FULL = "row_mask:0xf bank_mask:0xf"
    KVB = 256 << 20

    def rnd_bf16(dst, src):
        a(f"v_cvt_pk_bf16_f32 v{dst}, v{src}, v{src}")
        a(f"v_lshlrev_b32 v{dst}, 16, v{dst}")
    def rowred(v, op="add"):
        for n in (8, 4, 2, 1):
            a("s_nop 1")
            a(f"v_{op}_f32_dpp v{v}, v{v}, v{v} row_ror:{n} {FULL}")
    def swapadd(v, t, which):
        a(f"v_mov_b32 v{t}, v{v}")
        a("s_nop 1")
        a(f"v_permlane{which}_swap_b32 v{t}, v{v}")
        a("s_nop 1")
        a(f"v_add_f32 v{v}, v{v}, v{t}")
    def vecmat(mkA, n, B, acc, first_zero, wait=None, post=None):
        A_ = lambda i: vA0 if i % 2 == 0 else vA1
        mkA(0, A_(0))
        for i in range(n):
            if i < n - 1: mkA(i + 1, A_(i + 1))
            else: a("s_nop 1")
            if wait: wait(i)
            cc = "0" if (first_zero and i == 0) else v4(acc)
            a(f"v_mfma_f32_16x16x32_bf16 {v4(acc)}, {v4(A_(i))}, {B(i)}, {cc}")
            if post: post(i)
    def reduce345(r):
        a("s_nop 1")
        for k in range(4):
            a(f"v_add_f32_dpp v{r+k}, v{r+k}, v{r+k} row_ror:8 {FULL}")
        a("s_nop 1")
        a(f"v_permlane16_swap_b32 v{r}, v{r+1}")
        a(f"v_permlane16_swap_b32 v{r+2}, v{r+3}")
        a("s_nop 1")
        a(f"v_add_f32 v{r}, v{r}, v{r+1}")
        a(f"v_add_f32 v{r+2}, v{r+2}, v{r+3}")
        a("s_nop 1")
        a(f"v_permlane32_swap_b32 v{r}, v{r+2}")
        a("s_nop 1")
        a(f"v_add_f32 v{r}, v{r}, v{r+2}")
    def silu(dst, src):
        a(f"v_mul_f32 v{dst}, {f32(-LOG2E)}, v{src}")
        a(f"v_exp_f32 v{dst}, v{dst}")
        a("s_nop 0")
        a(f"v_add_f32 v{dst}, 1.0, v{dst}")
        a(f"v_rcp_f32 v{dst}, v{dst}")
        a("s_nop 0")
        a(f"v_mul_f32 v{dst}, v{src}, v{dst}")
        rnd_bf16(dst, dst)
    def maxchain(t, r0, n):
        a(f"v_max3_u32 v{t}, v{r0}, v{r0+1}, v{r0+2}")
        r = 3
        while r + 1 < n:
            a(f"v_max3_u32 v{t}, v{r0+r}, v{r0+r+1}, v{t}"); r += 2
        if r < n: a(f"v_max_u32 v{t}, v{r0+r}, v{t}")
    def poll(name, loads, t, r0, n, first_wait=True, back=0, many=None):
        lab(name)
        if first_wait: a("s_waitcnt vmcnt(0)")
        lab(name + "_chk")
        maxchain(t, r0, n)
        a(f"v_cmp_eq_u32 vcc, -1, v{t}")
        a("s_nop 4")
        a(f"s_cbranch_vccz {name}_done")
        a(f"s_sub_u32 s{sSpin}, s{sSpin}, 1")
        a(f"s_cbranch_scc1 {name}_done")
        a("s_mov_b64 exec, vcc")
        if many:
            a(f"s_bcnt1_i32_b64 s{sTm}, vcc")
            a(f"s_cmp_le_u32 s{sTm}, {many[0]}")
            a(f"s_cbranch_scc1 {name}_go")
            a(f"s_sleep {many[1]}")
            lab(name + "_go")
        if back: a(f"s_sleep {back}")
        loads()
        a("s_waitcnt vmcnt(0)")
        a(f"s_branch {name}_chk")
        lab(name + "_done")
        a("s_mov_b64 exec, -1")
    NC = opts.get("nc", 1); PSL = opts.get("psl", 4)
    sMk = [68, 70, 34 + 0]
    sMk = [68, 70, 66][:NC]
    def ppoll(name, loads, t, sets, n, nl, first_issued):
        for cx in range(NC):
            a(f"s_mov_b64 {sp(sMk[cx])}, -1")
            if cx == 0 and first_issued: continue
            if cx and PSL: a(f"s_sleep {PSL}")
            loads(sets[cx])
        lab(name)
        for cx in range(NC):
            a(f"s_waitcnt vmcnt({nl*(NC-1)})")
            a(f"s_mov_b64 exec, {sp(sMk[cx])}")
            maxchain(t, sets[cx], n)
            a(f"v_cmp_eq_u32 vcc, -1, v{t}")
            a("s_nop 4")
            a(f"s_cbranch_vccz {name}_ok{cx}")
            a(f"s_mov_b64 {sp(sMk[cx])}, vcc")
            a("s_mov_b64 exec, vcc")
            loads(sets[cx])
            if opts.get("psl2", 0): a(f"s_sleep {opts['psl2']}")
        a(f"s_sub_u32 s{sSpin}, s{sSpin}, 1")
        a(f"s_cbranch_scc0 {name}")
        a(f"s_branch {name}_ok0")
        for cx in range(NC - 1, 0, -1):
            lab(f"{name}_ok{cx}")
            a("s_mov_b64 exec, -1")
            for r in range(n): a(f"v_mov_b32 v{sets[NC]+r}, v{sets[cx]+r}")
            a(f"s_branch {name}_done")
        lab(f"{name}_ok0")
        a("s_mov_b64 exec, -1")
        for r in range(n): a(f"v_mov_b32 v{sets[NC]+r}, v{sets[0]+r}")
        lab(f"{name}_done")
    def jdep(dst, src, tmp):
        for j, p in enumerate(JB):
            d = dst if j == 0 else tmp
            a(f"s_bfe_u32 s{d}, s{src}, {0x10000 + j}")
            a(f"s_lshl_b32 s{d}, s{d}, {p}")
            if j: a(f"s_or_b32 s{dst}, s{dst}, s{tmp}")
    def jext(dst, src, tmp, sh):
        for j, p in enumerate(JB):
            d = dst if j == 0 else tmp
            a(f"s_bfe_u32 s{d}, s{src}, {0x10000 + p}")
            a(f"s_lshl_b32 s{d}, s{d}, {sh + j}")
            if j: a(f"s_or_b32 s{dst}, s{dst}, s{tmp}")
    dl = [0]
    def delay(point):
        for (pt, mod, rem, wv, n) in opts.get("stress", []):
            if pt != point: continue
            dl[0] += 1; L = f"L_dl{dl[0]}"
            a(f"s_and_b32 s100, s2, {mod}")
            a(f"s_cmp_lg_u32 s100, {rem}")
            a(f"s_cbranch_scc1 {L}e")
            if wv is not None:
                a(f"s_cmp_lg_u32 s{sW}, {wv}")
                a(f"s_cbranch_scc1 {L}e")
            a(f"s_mov_b32 s100, {n}")
            lab(L)
            a("s_sleep 127")
            a("s_sub_u32 s100, s100, 1")
            a(f"s_cbranch_scc0 {L}")
            lab(L + "e")
    def trace(base):
        if not opts.get("trace"): return
        a("s_memrealtime s[100:101]")
        a(f"s_lshl_b32 s{sT0}, s2, 2")
        a(f"s_add_u32 s{sT0}, s{sT0}, s{sW}")
        a(f"s_mul_i32 s{sT0}, s{sT0}, 48")
        a(f"s_add_u32 s{sT0}, s{sT0}, s{sT}")
        a(f"s_lshl_b32 s{sT0}, s{sT0}, 2")
        a(f"s_add_u32 s{sT0}, s{sT0}, {WS_DBG + 65536 + 4*base}")
        a("s_waitcnt lgkmcnt(0)")
        a(f"v_mov_b32 v{vT0}, s100")
        a(f"s_cmp_lg_u32 s{sW}, 0")
        a(f"s_cselect_b32 s{sT0}, {WS_SIZE}, s{sT0}")
        a(f"buffer_store_dword v{vT0}, v{vL23}, {srd(rWS)}, s{sT0} offen")
    def stamp(k):
        if STAMP: a(f"s_memrealtime s[{sSt+2*k}:{sSt+2*k+1}]")
    def swapop(v, t, which, op):
        a(f"v_mov_b32 v{t}, v{v}")
        a("s_nop 1")
        a(f"v_permlane{which}_swap_b32 v{t}, v{v}")
        a("s_nop 1")
        a(f"v_{op}_f32 v{v}, v{v}, v{t}")
    def stats(src, m, l):
        for r in range(4):
            a(f"v_lshlrev_b32 v{vP+2*r}, 16, v{src+r}")
            a(f"v_and_b32 v{vP+2*r+1}, 0xffff0000, v{src+r}")
        a(f"v_max3_f32 v{m}, v{vP}, v{vP+1}, v{vP+2}")
        a(f"v_max3_f32 v{m}, v{vP+3}, v{vP+4}, v{m}")
        a(f"v_max3_f32 v{m}, v{vP+5}, v{vP+6}, v{m}")
        a(f"v_max_f32 v{m}, v{vP+7}, v{m}")
        rowred(m, "max")
        swapop(m, vP + 8, 16, "max")
        swapop(m, vP + 8, 32, "max")
        for r in range(8): a(f"v_sub_f32 v{vP+r}, v{vP+r}, v{m}")
        for r in range(8): a(f"v_mul_f32 v{vP+r}, {f32(LOG2E)}, v{vP+r}")
        for r in range(8): a(f"v_exp_f32 v{vP+r}, v{vP+r}")
        for st in (4, 2):
            for r in range(st): a(f"v_add_f32 v{vP+r}, v{vP+r}, v{vP+st+r}")
        a(f"v_add_f32 v{l}, v{vP}, v{vP+1}")
        rowred(l)
        swapop(l, vP + 8, 16, "add")
        swapop(l, vP + 8, 32, "add")
    def kvload(dst, off, base=None):
        if base is None: base = sN0
        if off == 0:
            a(f"buffer_load_dwordx4 {dst}, v{vKo}, {srd(rS)}, s{base} offen {KVF}")
        else:
            a(f"s_add_u32 s{sN1}, s{base}, {off}")
            a(f"buffer_load_dwordx4 {dst}, v{vKo}, {srd(rS)}, s{sN1} offen {KVF}")
    def kdots(ring, i):
        k = ring + 4 * i
        a(f"v_dot2_f32_bf16 v{vP+i}, v{k}, v{vQ}, 0")
        for r in range(1, 4):
            a(f"v_dot2_f32_bf16 v{vP+i}, v{k+r}, v{vQ+r}, v{vP+i}")
    def tree(lds_off, addr=None):
        for i in range(8):
            a(f"v_add_f32_dpp v{vP+i}, v{vP+i}, v{vP+i} row_ror:8 row_mask:0xf bank_mask:0x3")
        for i in range(8):
            a(f"v_add_f32_dpp v{vP+i}, v{vP+i+8}, v{vP+i+8} row_ror:8 row_mask:0xf bank_mask:0xc")
        for i in range(4):
            a(f"v_add_f32_dpp v{vP+i}, v{vP+i}, v{vP+i} row_shl:4 row_mask:0xf bank_mask:0x5")
        for i in range(4):
            a(f"v_add_f32_dpp v{vP+i}, v{vP+i+4}, v{vP+i+4} row_shr:4 row_mask:0xf bank_mask:0xa")
        a("s_nop 0")
        for i in range(4):
            a(f"v_add_f32_dpp v{vP+i}, v{vP+i}, v{vP+i} quad_perm:[2,3,0,1] {FULL}")
        a(f"v_cndmask_b32 v{vP}, v{vP}, v{vP+2}, {sp(sCC)}")
        a(f"v_cndmask_b32 v{vP+1}, v{vP+1}, v{vP+3}, {sp(sCC)}")
        a("s_nop 0")
        a(f"v_add_f32_dpp v{vP}, v{vP}, v{vP} quad_perm:[1,0,3,2] {FULL}")
        a(f"v_add_f32_dpp v{vP+1}, v{vP+1}, v{vP+1} quad_perm:[1,0,3,2] {FULL}")
        a(f"v_cndmask_b32 v{vP}, v{vP}, v{vP+1}, {sp(sAA)}")
        rnd_bf16(vP, vP)
        a(f"v_mul_f32 v{vP}, {f32(128 ** -0.5)}, v{vP}")
        a(f"v_cvt_pk_bf16_f32 v{vP}, v{vP}, v{vP}")
        a(f"ds_write_b16 v{vSa if addr is None else addr}, v{vP} offset:{lds_off}")

    lab(KNAME)
    a("s_cmp_ge_u32 s2, 256")
    a("s_cbranch_scc1 L_end")
    a("s_load_dwordx16 s[4:19], s[0:1], 0")
    a("s_load_dwordx8 s[20:27], s[0:1], 64")
    stamp(0)
    a(f"v_lshrrev_b32 v{vT0}, 6, v0")
    a(f"v_lshlrev_b32 v{vFlo}, 8, v0")
    a(f"v_and_b32 v{vL}, 63, v0")
    a(f"v_readfirstlane_b32 s{sW}, v{vT0}")
    a(f"v_lshrrev_b32 v{vG}, 4, v{vL}")
    a(f"v_and_b32 v{vC}, 15, v{vL}")
    a(f"s_and_b32 s{sXc}, s2, 7")
    a(f"s_lshr_b32 s{sKk}, s2, 3")
    if HM == 1:
        a(f"s_and_b32 s{sH1}, s2, 31")
    else:
        a(f"s_lshl_b32 s{sH1}, s{sXc}, 2")
        a(f"s_and_b32 s{sT0}, s{sKk}, 3")
        a(f"s_or_b32 s{sH1}, s{sH1}, s{sT0}")
    a(f"s_lshr_b32 s{sJ1}, s2, 5")
    vxo, vxp, vxa, vwq = vP + 10, vP + 11, vM, vSn
    a(f"v_lshlrev_b32 v{vxo}, 5, v{vL}")
    a(f"v_lshrrev_b32 v{vT0}, 5, v{vL}")
    a(f"v_and_b32 v{vT1}, 31, v{vL}")
    a(f"v_lshlrev_b32 v{vT1}, 3, v{vT1}")
    a(f"v_lshl_add_u32 v{vxp}, v{vT0}, 10, v{vT1}")
    a(f"s_lshl_b32 s{sT0}, s{sW}, 8")
    a(f"v_add_u32 v{vxp}, s{sT0}, v{vxp}")
    a(f"v_lshlrev_b32 v{vC16}, 4, v{vC}")
    a(f"v_lshl_add_u32 v{vwq}, v{vG}, 18, v{vC16}")
    a(f"s_lshl_b32 s{sT0}, s{sW}, 20")
    a(f"s_lshl_b32 s{sT1}, s{sH1}, 8")
    a(f"s_add_u32 s{sT0}, s{sT0}, s{sT1}")
    a(f"v_add_u32 v{vwq}, s{sT0}, v{vwq}")
    a(f"v_lshlrev_b32 v{vKo}, 4, v{vL}")
    jdep(sN0, sJ1, sT0)
    a(f"s_lshl_b32 s{sT0}, s{sW}, 10")
    a(f"s_add_u32 s{sN0}, s{sN0}, s{sT0}")
    a(f"s_lshl_b32 s{sT0}, s{sH1}, 22")
    a(f"s_add_u32 s{sN0}, s{sN0}, s{sT0}")
    a(f"s_mov_b32 s{sBase0}, s{sN0}")
    a(f"s_add_u32 s{sN0}, s{sN0}, {128 << 20}")
    a(f"s_and_b32 s{sRot}, s{sJ1}, 3")
    a(f"s_lshl_b32 s{sRot}, s{sRot}, 16")
    for r, n in ((rWQ, 4 << 20), (rS, KVB)):
        a(f"s_mov_b32 s{r+2}, {n}")
        a(f"s_mov_b32 s{r+3}, 0x20000")
    a("s_waitcnt lgkmcnt(0)")
    a(f"global_load_dwordx4 {v4(vP)}, v{vxo}, {sp(sX)}")
    a(f"global_load_dwordx4 {v4(vP+4)}, v{vxo}, {sp(sX)} offset:16")
    a(f"global_load_dwordx2 {v2(vP+8)}, v{vxp}, {sp(sX)}")
    for r, p in ((rS, sKp), (rWQ, sWQp)):
        a(f"s_mov_b32 s{r}, s{p}")
        a(f"s_mov_b32 s{r+1}, s{p+1}")
    def wqload(i):
        a(f"s_add_u32 s{sT0}, s{sRot}, {i*8192}")
        a(f"s_and_b32 s{sT0}, s{sT0}, 0x3ffff")
        if NOQ: a(f"s_mov_b32 s{sT0}, 0x7000000")
        a(f"buffer_load_dwordx4 {a4(aWQ+4*(i%16))}, v{vwq}, {srd(rWQ)}, s{sT0} offen {WQF}")
    Gt, Ut, Dn, FB = vF, vF + 8, vF + 16, vF + 24
    vSel = [vQ, vQ + 1, vQ + 2, vQ + 3, vQ1, vQ1 + 1, vQ1 + 2, vQ1 + 3]
    vXn = vP
    XR = [vX1, vX2][:NX]
    bulk = [(f"y{j}", i) for j in range(2 - NY, 2) for i in range(16)] + [(f"x{j}", i) for j in range(NX) for i in range(16)] + [("k", i) for i in range(16)]
    FASTPRO = opts.get("fastpro", False)
    seq = []; qi = 32 if FASTPRO else 0; bi = 0; p = 0
    while qi < 32:
        if MIX[p % len(MIX)] == "q" or bi >= len(bulk): seq.append(("q", qi)); qi += 1
        else: seq.append(bulk[bi]); bi += 1
        p += 1
    nq_end = len(seq)
    seq += bulk[bi:]
    assert sum(k == "q" for k, _ in seq[:NPRE]) <= 16
    issued = []
    def issue1(op):
        kind, i = op
        if kind == "q": wqload(i)
        elif kind == "k": kvload(v4(vR + 4 * i), ioff(i))
        elif kind[0] == "y":
            j = int(kind[1]); kvload(a4(64 + 64 * j + 4 * i), ((NK0 + j) << TS) + ioff(i), sBase0)
        else:
            j = int(kind[1]); kvload(v4(XR[j] + 4 * i), ((NK0 + j) << TS) + ioff(i))
        issued.append(op)
    def younger(op): return min(63, len(issued) - 1 - issued.index(op))
    for op in seq[:NPRE]: issue1(op)
    for r, p, n in ((rWS, sWSp, WS_SIZE), (rDBG, sDBGp, 256), (rOUT, sOUTp, 2048)):
        a(f"s_mov_b32 s{r}, s{p}")
        a(f"s_mov_b32 s{r+1}, s{p+1}")
        a(f"s_mov_b32 s{r+2}, {n}")
        a(f"s_mov_b32 s{r+3}, 0x20000")
    a(f"s_mov_b32 s{sCC}, 0xcccccccc"); a(f"s_mov_b32 s{sCC+1}, 0xcccccccc")
    a(f"s_mov_b32 s{sAA}, 0xaaaaaaaa"); a(f"s_mov_b32 s{sAA+1}, 0xaaaaaaaa")
    a(f"s_mov_b32 s{sOnes}, 0x3f803f80")
    a(f"s_mov_b32 s{sSpin}, 0x80000")
    a(f"s_movk_i32 s{sC4k}, 4096")
    a(f"s_mov_b32 s{sPh}, 0")
    TFL = NK0 + 1
    a(f"s_and_b32 s{sT0}, s{sKk}, 7")
    a(f"s_cmp_eq_u32 s{sT0}, s{sXc}")
    a(f"s_cselect_b32 s{sCons}, 1, 0")
    a(f"s_mov_b32 s{sP}, 99")
    XST = opts.get("xst", "0")
    if XST == "j": a(f"s_bfe_u32 s{sF1}, s2, 0x20005")
    elif XST == "h": a(f"s_bfe_u32 s{sF1}, s2, 0x20003")
    elif XST == "w": a(f"s_mov_b32 s{sF1}, s{sW}")
    else: a(f"s_mov_b32 s{sF1}, 0")
    a(f"s_add_u32 s{sF1}, s{sF1}, 1")
    a(f"s_add_u32 s{sBase2}, s{sKk}, 32")
    a(f"s_lshl_b32 s{sBase2}, s{sBase2}, 22")
    a(f"s_lshl_b32 s{sT0}, s{sW}, 10")
    a(f"s_add_u32 s{sBase2}, s{sBase2}, s{sT0}")
    a(f"s_lshl_b32 s{sScB}, s{sKk}, 15")
    a(f"s_add_u32 s{sScB}, s{sScB}, s{sT0}")
    a(f"s_add_u32 s{sScB}, s{sScB}, {WS_SC}")
    jdep(sFirst2, sXc, sT0)
    a(f"s_add_u32 s{sFirst2}, s{sFirst2}, s{sBase2}")
    a(f"s_lshl_b32 s{sCnt}, s{sKk}, 8")
    a(f"s_add_u32 s{sCnt}, s{sCnt}, {WS_CNT}")
    a(f"s_lshl_b32 s{sT0}, s{sH1}, 3")
    a(f"s_add_u32 s{sT0}, s{sT0}, s{sJ1}")
    a(f"s_lshl_b32 s{sPart}, s{sT0}, 10")
    a(f"v_lshlrev_b32 v{vL23}, 23, v{vL}")
    a(f"v_lshlrev_b32 v{vL4}, 2, v{vL}")
    a(f"v_lshlrev_b32 v{vL2}, 1, v{vL}")
    a(f"s_lshl_b32 s{sT0}, s{sW}, 11")
    a(f"v_add_u32 v{vSa}, s{sT0}, v{vL2}")
    a(f"v_add_u32 v{vFlo}, s2, v{vFlo}")
    a(f"v_add_u32 v{vT0}, 31, v{vL}")
    a(f"v_lshrrev_b32 v{vT0}, 6, v{vT0}")
    a(f"v_lshl_add_u32 v{vPa}, v{vT0}, 23, v{vKo}")
    a(f"v_and_b32 v{vT0}, 1, v{vG}")
    a(f"v_lshlrev_b32 v{vT0}, 4, v{vT0}")
    a(f"v_lshl_add_u32 v{vLo}, v{vC}, 5, v{vT0}")
    a(f"v_lshl_add_u32 v{vWoA}, v{vG}, 12, v{vC16}")
    a(f"s_lshr_b32 s{sT0}, s2, 2")
    a(f"s_lshl_b32 s{sT0}, s{sT0}, 16")
    a(f"s_lshl_b32 s{sT1}, s{sW}, 14")
    a(f"s_add_u32 s{sT0}, s{sT0}, s{sT1}")
    a(f"s_and_b32 s{sT1}, s2, 3")
    a(f"s_lshl_b32 s{sT1}, s{sT1}, 8")
    a(f"s_add_u32 s{sT0}, s{sT0}, s{sT1}")
    a(f"v_add_u32 v{vWoA}, s{sT0}, v{vWoA}")
    a(f"v_lshrrev_b32 v{vT0}, 1, v{vG}")
    a(f"v_lshlrev_b32 v{vT0}, 4, v{vT0}")
    a(f"v_lshrrev_b32 v{vT1}, 2, v{vC}")
    a(f"v_add_u32 v{vT0}, v{vT0}, v{vT1}")
    a(f"v_and_b32 v{vT1}, 0x7f, v{vLo}")
    a(f"v_lshl_add_u32 v{vYo}, v{vT0}, 13, v{vT1}")
    a(f"s_and_b32 s{sT0}, s2, 3")
    a(f"s_lshl_b32 s{sT0}, s{sT0}, 15")
    a(f"s_lshr_b32 s{sT1}, s2, 2")
    a(f"s_lshl_b32 s{sT1}, s{sT1}, 7")
    a(f"s_add_u32 s{sT0}, s{sT0}, s{sT1}")
    a(f"s_add_u32 s{sT0}, s{sT0}, {WS_Y}")
    a(f"v_add_u32 v{vYo}, s{sT0}, v{vYo}")
    a(f"s_lshl_b32 s{sT0}, s{sW}, 2")
    a(f"v_add_u32 v{vT0}, s{sT0}, v{vT0}")
    a(f"v_lshl_add_u32 v{vFo}, v{vT0}, 13, v{vT1}")
    a(f"v_add_u32 v{vFo}, {WS_F}, v{vFo}")
    a(f"v_and_b32 v{vXo}, 7, v{vL}")
    a(f"v_lshl_add_u32 v{vXo}, v{vXo}, 2, v{vG}")
    a(f"s_lshl_b32 s{sT0}, s{sCid}, 6")
    a(f"v_lshl_add_u32 v{vXo}, v{vXo}, 1, s{sT0}")
    a(f"v_and_b32 v{vT0}, 1, v{vC}")
    a(f"v_lshlrev_b32 v{vT0}, 4, v{vT0}")
    a(f"v_mov_b32 v{vT1}, 0xffff")
    a(f"v_lshlrev_b32 v{vT0}, v{vT0}, v{vT1}")
    a(f"v_bfe_u32 v{vT1}, v{vC}, 1, 2")
    for r in range(4):
        a(f"v_cmp_eq_u32 vcc, {r}, v{vT1}")
        a("s_nop 1")
        a(f"v_cndmask_b32 v{vMask+r}, 0, v{vT0}, vcc")
    a(f"v_mov_b32 v{vT0}, 0x0c0c0c0c")
    a(f"s_mov_b32 s{sT0}, 0x01000100")
    a(f"s_mov_b32 s{sT1}, 0x03020302")
    for r in range(4):
        a(f"v_bfi_b32 v{vSel[r]}, v{vMask+r}, s{sT0}, v{vT0}")
        a(f"v_bfi_b32 v{vSel[4+r]}, v{vMask+r}, s{sT1}, v{vT0}")
    a(f"v_lshrrev_b32 v{vxa}, 3, v{vC}")
    a(f"v_lshlrev_b32 v{vxa}, 10, v{vxa}")
    a(f"v_lshl_add_u32 v{vxa}, v{vG}, 6, v{vxa}")
    a(f"s_lshl_b32 s{sT0}, s{sW}, 8")
    a(f"v_add_u32 v{vxa}, s{sT0}, v{vxa}")
    a(f"v_mov_b32 v{vT1}, -1")
    a(f"ds_write_b32 v{vL4}, v{vT1} offset:{TK}")
    a(f"ds_write_b32 v{vL4}, v{vT1} offset:{TK+256}")
    a(f"s_mov_b32 s{sFin}, 0")
    ECLR = opts.get("eclr", True)
    def clears(vZ):
        c("reset the hand-off slots this workgroup owns")
        for r in range(4): a(f"v_mov_b32 v{vZ+r}, -1")
        a(f"s_cmp_eq_u32 s{sCons}, 0")
        a("s_cbranch_scc1 L_h1a")
        a(f"s_lshl_b32 s{sT0}, s{sCid}, 13")
        a(f"s_lshl_b32 s{sT1}, s{sW}, 11")
        a(f"s_add_u32 s{sT0}, s{sT0}, s{sT1}")
        a(f"s_add_u32 s{sT0}, s{sT0}, {WS_F}")
        a(f"buffer_store_dwordx4 {v4(vZ)}, v{vKo}, {srd(rWS)}, s{sT0} offen {CS}")
        a(f"buffer_store_dwordx4 {v4(vZ)}, v{vKo}, {srd(rWS)}, s{sT0} offen offset:1024 {CS}")
        lab("L_h1a")
        a(f"s_cmp_lg_u32 s{sW}, 0")
        a("s_cbranch_scc1 L_h1b")
        a(f"buffer_store_dwordx4 {v4(vZ)}, v{vYo}, {srd(rWS)}, 0 offen {CS}")
        a(f"buffer_store_dwordx4 {v4(vZ)}, v{vPa}, {srd(rWS)}, s{sPart} offen {CS}")
        a(f"s_add_u32 s{sT0}, s2, 256")
        a(f"s_lshl_b32 s{sT0}, s{sT0}, 10")
        a(f"buffer_store_dwordx4 {v4(vZ)}, v{vPa}, {srd(rWS)}, s{sT0} offen {CS}")
        a(f"s_cmp_lg_u32 s{sXc}, 0")
        a("s_cbranch_scc1 L_h1b")
        a(f"v_mov_b32 v{vT0}, 0")
        a(f"buffer_store_dword v{vT0}, v{vL23}, {srd(rWS)}, s{sCnt} offen sc1")
        lab("L_h1b")
    if ECLR: clears(vO)
    delay("start")
    c("LayerNorm")
    a(f"s_waitcnt vmcnt({NPRE})")
    stamp(1)
    vs, vmn, vacc0, vacc1, vt, vu = vA0, vA0 + 1, vA0 + 2, vA0 + 3, vA1, vA1 + 1
    a(f"v_dot2_f32_bf16 v{vs}, v{vP}, s{sOnes}, 0")
    for r in range(1, 8):
        a(f"v_dot2_f32_bf16 v{vs}, v{vP+r}, s{sOnes}, v{vs}")
    a("s_nop 1")
    rowred(vs)
    swapadd(vs, vt, 16)
    a(f"v_mul_f32 v{vmn}, {f32(1/512)}, v{vs}")
    a(f"v_mov_b32 v{vacc0}, 0")
    a(f"v_mov_b32 v{vacc1}, 0")
    for r in range(8):
        a(f"v_lshlrev_b32 v{vt}, 16, v{vP+r}")
        a(f"v_and_b32 v{vu}, 0xffff0000, v{vP+r}")
        a(f"v_sub_f32 v{vt}, v{vt}, v{vmn}")
        a(f"v_sub_f32 v{vu}, v{vu}, v{vmn}")
        a(f"v_fmac_f32 v{vacc0}, v{vt}, v{vt}")
        a(f"v_fmac_f32 v{vacc1}, v{vu}, v{vu}")
    a(f"v_add_f32 v{vs}, v{vacc0}, v{vacc1}")
    rowred(vs)
    swapadd(vs, vt, 16)
    a(f"v_mul_f32 v{vs}, {f32(1/512)}, v{vs}")
    rnd_bf16(vs, vs)
    a(f"v_add_f32 v{vs}, {f32(1e-5)}, v{vs}")
    rnd_bf16(vs, vs)
    a(f"v_sqrt_f32 v{vs}, v{vs}")
    rnd_bf16(vmn, vmn)
    rnd_bf16(vs, vs)
    a(f"v_rcp_f32 v{vs}, v{vs}")
    for r in (8, 9):
        a(f"v_lshlrev_b32 v{vt}, 16, v{vP+r}")
        a(f"v_and_b32 v{vu}, 0xffff0000, v{vP+r}")
        a(f"v_sub_f32 v{vt}, v{vt}, v{vmn}")
        a(f"v_sub_f32 v{vu}, v{vu}, v{vmn}")
        a(f"v_cvt_pk_bf16_f32 v{vu}, v{vt}, v{vu}")
        a(f"v_lshlrev_b32 v{vt}, 16, v{vu}")
        a(f"v_and_b32 v{vu}, 0xffff0000, v{vu}")
        a(f"v_mul_f32 v{vt}, v{vt}, v{vs}")
        a(f"v_mul_f32 v{vu}, v{vu}, v{vs}")
        a(f"v_cvt_pk_bf16_f32 v{vP+r}, v{vt}, v{vu}")
    a(f"ds_write_b64 v{vxp}, {v2(vP+8)} offset:{XN}")
    a("s_waitcnt lgkmcnt(0)")
    for t in range(4):
        a(f"s_lshr_b32 s{sT0}, s{sRot}, 12")
        a(f"s_add_u32 s{sT0}, s{sT0}, {16*t}")
        a(f"s_and_b32 s{sT0}, s{sT0}, 63")
        a(f"v_add_u32 v{vt}, s{sT0}, v{vxa}")
        a(f"ds_read_b128 {v4(vXn+4*t)}, v{vt} offset:{XN}")
    c("q projection interleaved with the load stream")
    qdone = [32 if FASTPRO else 0]
    def qstep():
        j = qdone[0]
        A = vA0 if j % 2 == 0 else vA1
        if j == 0: a("s_waitcnt lgkmcnt(0)")
        for r in range(4):
            a(f"v_perm_b32 v{A+r}, v{vXn+j//2}, v{vXn+j//2}, v{vSel[4*(j%2)+r]}")
        a(f"s_waitcnt vmcnt({younger(('q', j))})")
        a("s_nop 0")
        a(f"v_mfma_f32_16x16x32_bf16 {v4(vO)}, {v4(A)}, {a4(aWQ+4*(j%16))}, {'0' if j == 0 else v4(vO)}")
        qdone[0] += 1
    stop = max(NPRE, min(len(seq), nq_end + NPOST))
    for op in seq[NPRE:stop]:
        if op[0] == "q":
            while qdone[0] <= op[1] - 16: qstep()
        issue1(op)
        while qdone[0] < 32 and ("q", qdone[0]) in issued and younger(("q", qdone[0])) >= LAG: qstep()
    while qdone[0] < 32: qstep()
    a(f"v_lshrrev_b32 v{vT0}, 1, v{vG}")
    a(f"v_lshl_add_u32 v{vT0}, v{vT0}, 9, v{vLo}")
    a(f"s_lshl_b32 s{sT0}, s{sW}, 10")
    a(f"v_add_u32 v{vT0}, s{sT0}, v{vT0}")
    a(f"v_mov_b32 v{vM}, {f32(-3.0e38)}")
    a(f"v_mov_b32 v{vLs}, 0")
    a(f"s_mov_b32 s{sT}, 0")
    a(f"s_lshl_b32 s{sT0}, s{sW}, 9")
    a(f"v_add_u32 v{vLo}, s{sT0}, v{vLo}")
    a(f"v_lshlrev_b32 v{vT1}, 3, v{vL}")
    a(f"ds_write_b128 v{vT0}, {v4(vO)} offset:{QP}")
    a("s_waitcnt lgkmcnt(0)")
    a("s_barrier")
    def qfetch(dst, off):
        for w in range(4):
            a(f"ds_read_b64 {v2(vP+2*w)}, v{vT1} offset:{QP+1024*w+off}")
        a("s_waitcnt lgkmcnt(0)")
        for w in range(1, 4):
            a(f"v_add_f32 v{vP}, v{vP}, v{vP+2*w}")
            a(f"v_add_f32 v{vP+1}, v{vP+1}, v{vP+2*w+1}")
        a(f"v_cvt_pk_bf16_f32 v{vP}, v{vP}, v{vP+1}")
        for r in range(4):
            a(f"ds_bpermute_b32 v{dst+r}, v{vC16}, v{vP} offset:{4*r}")
    qfetch(vQ, 512)
    stamp(2)
    for op in seq[stop:]: issue1(op)
    assert [op for op in issued if op[0] == "k"] == [("k", i) for i in range(16)]
    for r in range(4): a(f"v_mov_b32 v{vO+r}, 0")
    a(f"s_add_u32 s{sN0}, s{sN0}, {1 << TS}")
    a("s_waitcnt lgkmcnt(0)")
    c("K loop")
    a(".p2align 6")
    lab("L_kloop")
    for i in range(16):
        a("s_waitcnt vmcnt(15)")
        kdots(vR, i)
        kvload(v4(vR + 4 * i), ioff(i))
    tree(SCL)
    a(f"v_add_u32 v{vSa}, 128, v{vSa}")
    trace(0)
    a(f"s_add_u32 s{sT}, s{sT}, 1")
    a(f"s_add_u32 s{sN0}, s{sN0}, {1 << TS}")
    hooks = [(1, "L_h1"), (TFL, "L_h2"), (NK0 - 1, "L_hb1"), (NK0, "L_hq1"), (NK - 1, "L_hv"), (NK, "L_kend")]
    assert len(set(t for t, _ in hooks)) == len(hooks)
    for t, l in hooks:
        a(f"s_cmp_eq_u32 s{sT}, {t}")
        a(f"s_cbranch_scc1 {l}")
    lab("L_xd")
    a(f"s_sub_u32 s{sT0}, s{sT}, s{sF1}")
    a(f"s_cmp_gt_u32 s{sT0}, 1")
    a("s_cbranch_scc1 L_kloop")
    a(f"v_and_b32 v{vT1}, 0xfffffc7f, v{vSa}")
    a(f"s_cmp_eq_u32 s{sT0}, 1")
    a("s_cbranch_scc1 L_x1")
    for j in range(NX):
        lab(f"L_x{j}")
        for i in range(16): kdots(XR[j], i)
        tree(SCL + (NK0 + j) * 128, vT1)
        if NY:
            a(f"s_cmp_gt_u32 s{sT}, {NK0}")
            a("s_cbranch_scc1 L_kloop")
            for r in range(64): a(f"v_accvgpr_read_b32 v{XR[j]+r}, a{64+64*j+r}")
        a("s_branch L_kloop")
    lab("L_h1")
    if not ECLR: clears(vA0)
    a("s_branch L_xd")
    lab("L_h2")
    a("s_barrier")
    a(f"v_mov_b32 v{vT0}, 1")
    a(f"buffer_store_byte v{vT0}, v{vFlo}, {srd(rDBG)}, 0 offen sc1")
    a("s_branch L_xd")
    lab("L_hb1")
    if opts.get("wtlb", False):
        a(f"s_load_dword s100, {sp(sVp)}, s{sBase0}")
        a(f"s_load_dword s101, {sp(sVp)}, s{sBase2}")
        a(f"s_add_u32 s{sT0}, s{sBase2}, {1 << 21}")
        a(f"s_load_dword s100, {sp(sVp)}, s{sT0}")
        a(f"s_lshl_b32 s{sT0}, s2, 14")
        a(f"s_load_dword s101, {sp(sWOp)}, s{sT0}")
        a(f"s_load_dword s100, {sp(sWGp)}, 0")
        a(f"s_load_dword s101, {sp(sWUp)}, 0")
        a(f"s_load_dword s100, {sp(sWDp)}, 0")
    a(f"s_mov_b32 s{sN0}, s{sBase0}")
    a("s_branch L_xd")
    lab("L_hq1")
    a(f"s_add_u32 s{sF1}, s{sF1}, {NK0 if NY else 99}")
    a(f"v_lshlrev_b32 v{vT1}, 3, v{vL}")
    qfetch(vQ, 0)
    a(f"v_add_u32 v{vSa}, {128*NX}, v{vSa}")
    a(f"s_lshl_b32 s{sT0}, s{sW}, 11")
    a(f"v_add_u32 v{vT0}, s{sT0}, v{vKo}")
    a(f"ds_read_b128 {v4(vA1)}, v{vT0} offset:{SCL}")
    a(f"s_lshl_b32 s{sT0}, s{sPart}, 2")
    a(f"s_lshl_b32 s{sT1}, s{sW}, 10")
    a(f"s_add_u32 s{sT0}, s{sT0}, s{sT1}")
    a(f"s_add_u32 s{sT0}, s{sT0}, {WS_SC}")
    a("s_waitcnt lgkmcnt(0)")
    a(f"buffer_store_dwordx4 {v4(vA1)}, v{vKo}, {srd(rWS)}, s{sT0} offen {CS}")
    stats(vA1, vA0, vA0 + 1)
    a(f"s_sub_u32 s{sT0}, s{sT0}, {WS_SC}")
    a(f"s_lshr_b32 s{sT0}, s{sT0}, 7")
    a(f"s_add_u32 s{sT0}, s{sT0}, {WS_ST}")
    a(f"buffer_store_dwordx2 {v2(vA0)}, v{vL23}, {srd(rWS)}, s{sT0} offen {CS}")
    a("s_branch L_kloop")
    lab("L_hv")
    a(f"s_mov_b32 s{rS}, s{sVp}")
    a(f"s_mov_b32 s{rS+1}, s{sVp+1}")
    a(f"s_mov_b32 s{sN0}, s{sBase0}")
    a("s_branch L_xd")
    lab("L_kend")
    delay("kend")
    stamp(3)
    a(f"v_and_b32 v{vL2}, 0x7c, v{vL2}")
    a(f"s_lshl_b32 s{sT0}, s{sW}, 11")
    a(f"v_add_u32 v{vSa}, s{sT0}, v{vL2}")
    a(f"ds_read_b32 v{vSn}, v{vSa} offset:{SCL+1024}")
    a(f"v_add_u32 v{vT0}, s{sT0}, v{vKo}")
    a(f"ds_read_b128 {v4(vA1)}, v{vT0} offset:{SCL+1024}")
    vSh = vQ
    a(f"v_and_b32 v{vSh}, 1, v{vL}")
    a(f"v_lshlrev_b32 v{vSh}, 4, v{vSh}")
    a(f"s_mov_b32 s{sT}, 0")
    vGp, vGm, vGy = vQ1, vQ1 + 1, vQ1 + 2
    a(f"v_lshrrev_b32 v{vT0}, 3, v{vC}")
    a(f"v_and_b32 v{vT1}, 7, v{vC}")
    a(f"v_lshl_add_u32 v{vT0}, v{vT0}, 8, v{vT1}")
    a(f"s_lshl_b32 s{sT0}, s{sKk}, 3")
    a(f"v_add_u32 v{vT0}, s{sT0}, v{vT0}")
    a(f"v_lshlrev_b32 v{vGm}, 10, v{vT0}")
    a(f"v_lshl_add_u32 v{vGp}, v{vG}, 4, v{vGm}")
    a(f"s_lshr_b32 s{sT0}, s{sXc}, 2")
    a(f"s_lshl_b32 s{sT0}, s{sT0}, 8")
    a(f"s_lshl_b32 s{sT1}, s{sW}, 6")
    a(f"s_add_u32 s{sT0}, s{sT0}, s{sT1}")
    a(f"v_add_u32 v{vGp}, s{sT0}, v{vGp}")
    a(f"s_lshl_b32 s{sT0}, s{sCid}, 13")
    a(f"s_lshl_b32 s{sT1}, s{sW}, 11")
    a(f"s_add_u32 s{sT0}, s{sT0}, s{sT1}")
    a(f"s_add_u32 s{sT0}, s{sT0}, {WS_Y}")
    a(f"v_add_u32 v{vGy}, s{sT0}, v{vKo}")
    vCl = vQ + 1
    a(f"s_lshl_b32 s{sT0}, s{sW}, 8")
    a(f"v_add_u32 v{vCl}, s{sT0}, v{vL4}")
    vSc, vSt = vQ1 + 3, vQ + 2
    a(f"v_mov_b32 v{vSc}, 1.0")
    a(f"s_mov_b32 s{sNa}, s{sN0}")
    a(f"s_mov_b32 s{sNb}, s{sN0}")
    a("s_waitcnt lgkmcnt(0)")
    stats(vA1, vM, vLs)
    c("V loop: vSn = scores (u16) of the block in flight, sN0 = next block")
    a(".p2align 6")
    lab("L_vloop")
    vS, tm, al, pp = vP, vP + 1, vP + 2, vP + 3
    a(f"v_lshrrev_b32 v{vS}, v{vSh}, v{vSn}")
    a(f"v_lshlrev_b32 v{vS}, 16, v{vS}")
    a(f"v_sub_f32 v{pp}, v{vS}, v{vM}")
    a(f"v_mul_f32 v{pp}, {f32(LOG2E)}, v{pp}")
    a(f"v_exp_f32 v{pp}, v{pp}")
    a(f"s_cmp_ge_u32 s{sT}, 7")
    a("s_cbranch_scc1 L_sg")
    a(f"v_add_u32 v{vSa}, 128, v{vSa}")
    a(f"ds_read_b32 v{vSn}, v{vSa} offset:{SCL+1024}")
    a("s_branch L_sreq")
    lab("L_sg")
    a(f"s_cmp_ge_u32 s{sN0}, {KVB}")
    a("s_cbranch_scc1 L_vlast")
    jext(sT0, sN0, sT1, 12)
    a(f"s_bfe_u32 s{sT1}, s{sN0}, {0x30000 + TS}")
    a(f"s_lshl_b32 s{sT1}, s{sT1}, 7")
    a(f"s_add_u32 s{sT0}, s{sT0}, s{sT1}")
    a(f"s_add_u32 s{sT0}, s{sT0}, s{sScB}")
    if not NOSC: a(f"buffer_load_dword v{vSn}, v{vL2}, {srd(rWS)}, s{sT0} offen sc1")
    lab("L_sreq")
    a(f"s_cmp_lt_u32 s{sT}, {SV-2}")
    a("s_cbranch_scc1 L_sdone")
    a(f"s_cmp_lg_u32 s{sW}, 0")
    a("s_cbranch_scc1 L_sdone")
    a(f"v_mov_b32 v{vIdx}, 1")
    a(f"buffer_atomic_add v{vIdx}, v{vL23}, {srd(rWS)}, s{sCnt} offen sc0 sc1")
    lab("L_sdone")
    def softmax():
        a(f"v_mul_f32 v{pp}, v{pp}, v{vSc}")
        a(f"v_cvt_pk_bf16_f32 v{pp}, v{pp}, v{pp}")
        a("s_nop 1")
    softmax()
    def mkAp(i, A):
        for r in range(4):
            a(f"v_and_b32_dpp v{A+r}, v{pp}, v{vMask+r} row_newbcast:{i} {FULL}")
    vecmat(mkAp, 16, lambda i: v4(vR + 4 * i), vO, False, lambda i: a("s_waitcnt vmcnt(15)"), lambda i: kvload(v4(vR + 4 * i), ioff(i), sNa if i < 8 else sNb))
    trace(16)
    a(f"s_add_u32 s{sT}, s{sT}, 1")
    a("s_waitcnt lgkmcnt(0)")
    a(f"s_cmp_ge_u32 s{sT}, {SV-1}")
    a("s_cbranch_scc1 L_dyn")
    a(f"s_add_u32 s{sNa}, s{sNa}, {1 << TS}")
    if S2:
        a(f"s_cmp_eq_u32 s{sT}, 7")
        a(f"s_cselect_b32 s{sNa}, s{sFirst2}, s{sNa}")
        a(f"s_mov_b32 s{sN0}, s{sNa}")
    a(f"s_mov_b32 s{sNb}, s{sNa}")
    lab("L_vhooks")
    a(f"s_cmp_gt_u32 s{sT}, 8")
    a("s_cbranch_scc1 L_vloop")
    for t, l in ((8, "L_comb"), (HF, "L_hfl"), (HF + 1, "L_hck"), (HF + 2, "L_hst")):
        a(f"s_cmp_eq_u32 s{sT}, {t}")
        a(f"s_cbranch_scc1 {l}")
    a("s_branch L_vloop")
    lab("L_dyn")
    a(f"s_lshl_b32 s{sT1}, s{sT}, 2")
    a(f"v_mov_b32 v{vT0}, s{sT1}")
    a(f"s_cmp_lg_u32 s{sW}, 0")
    a("s_cbranch_scc1 L_fol")
    a(f"v_readfirstlane_b32 s{sT0}, v{vIdx}")
    a("s_nop 3")
    a(f"s_min_u32 s{sT0}, s{sT0}, 0xffff")
    a(f"v_mov_b32 v{vIdx}, s{sT0}")
    a(f"ds_write_b32 v{vT0}, v{vIdx} offset:{TK}")
    a("s_branch L_got")
    lab("L_fol")
    a(f"ds_read_b32 v{vIdx}, v{vT0} offset:{TK}")
    a("s_waitcnt lgkmcnt(0)")
    a(f"v_readfirstlane_b32 s{sT0}, v{vIdx}")
    a("s_nop 3")
    a(f"s_cmp_eq_u32 s{sT0}, -1")
    a("s_cbranch_scc1 L_fol")
    lab("L_got")
    POOL = 64 - 8 * S2; NF = POOL - NH; A_ = opts.get("fa", 52) - 8 * S2
    a(f"s_sub_u32 s{sT1}, s{sT0}, {A_}")
    a(f"s_min_u32 s{sT1}, s{sT1}, 3")
    a(f"s_lshl_b32 s{sP}, s{sT1}, 5")
    a(f"s_add_u32 s{sP}, s{sP}, s{sKk}")
    a(f"s_cmp_lt_u32 s{sKk}, 24")
    a(f"s_cselect_b32 s{sT1}, 2, 1")
    a(f"s_cmp_ge_u32 s{sT0}, {A_}")
    a(f"s_cselect_b32 s{sT1}, s{sT1}, 0")
    a(f"s_sub_u32 s{sT0}, s{sT0}, s{sT1}")
    a(f"s_cmp_lt_u32 s{sP}, 56")
    a(f"s_cselect_b32 s{sT0}, 0xffff, s{sT0}")
    a(f"s_sub_u32 s{sT1}, s{sT0}, {NF}")
    a(f"s_lshr_b32 s{sT2}, s{sT1}, 1")
    a(f"s_add_u32 s{sT2}, s{sT2}, {NF}")
    a(f"s_and_b32 s{sTm}, s{sT1}, 1")
    a(f"s_cmp_ge_u32 s{sT0}, {NF}")
    a(f"s_cselect_b32 s{sT0}, s{sT2}, s{sT0}")
    a(f"s_cselect_b32 s{sTm}, s{sTm}, 2")
    jdep(sT1, sT0, sT2)
    a(f"s_lshr_b32 s{sT2}, s{sT0}, 3")
    if S2: a(f"s_add_u32 s{sT2}, s{sT2}, {S2}")
    a(f"s_lshl_b32 s{sT2}, s{sT2}, {TS}")
    a(f"s_add_u32 s{sT1}, s{sT1}, s{sT2}")
    a(f"s_add_u32 s{sT1}, s{sT1}, s{sBase2}")
    a(f"s_cmp_ge_u32 s{sT0}, {POOL}")
    a(f"s_cselect_b32 s{sN0}, {KVB}, s{sT1}")
    a(f"s_cmp_eq_u32 s{sTm}, 1")
    a(f"s_cselect_b32 s{sNa}, {KVB}, s{sN0}")
    a(f"s_cmp_eq_u32 s{sTm}, 0")
    a(f"s_cselect_b32 s{sNb}, {KVB}, s{sN0}")
    a("s_branch L_vhooks")
    lab("L_hfl")
    delay("v4")
    a(f"buffer_load_dword v{vFl}, v{vL4}, {srd(rDBG)}, 0 offen sc1")
    a("s_branch L_vloop")
    lab("L_hck")
    a(f"v_cmp_ne_u32 vcc, 0x01010101, v{vFl}")
    a("s_nop 4")
    a("s_cbranch_vccz L_hok")
    a(f"s_sub_u32 s{sSpin}, s{sSpin}, 1")
    a("s_cbranch_scc1 L_hok")
    a("s_sleep 4")
    a(f"buffer_load_dword v{vFl}, v{vL4}, {srd(rDBG)}, 0 offen sc1")
    a("s_waitcnt vmcnt(0)")
    a("s_branch L_hck")
    lab("L_hok")
    a(f"v_and_b32 v{vT0}, 31, v{vL}")
    a(f"v_lshlrev_b32 v{vT0}, 3, v{vT0}")
    a(f"s_lshl_b32 s{sT0}, s{sKk}, 8")
    a(f"s_add_u32 s{sT0}, s{sT0}, {WS_ST}")
    a(f"buffer_load_dwordx2 {v2(vSt)}, v{vT0}, {srd(rWS)}, s{sT0} offen sc1")
    a(f"s_cmp_eq_u32 s{sCons}, 0")
    a("s_cbranch_scc1 L_vloop")
    a(f"global_load_ushort v{vT2}, v{vXo}, {sp(sX)}")
    if opts.get("wout", False):
        a(f"buffer_load_ushort v{vT1}, v{vXo}, {srd(rOUT)}, 0 offen")
    a("s_branch L_vloop")
    lab("L_hst")
    a(f"v_mov_b32 v{vP}, v{vSt}")
    rowred(vP, "max")
    swapop(vP, vP + 1, 16, "max")
    a(f"v_sub_f32 v{vSt}, v{vSt}, v{vP}")
    a(f"v_mul_f32 v{vSt}, {f32(LOG2E)}, v{vSt}")
    a(f"v_exp_f32 v{vSt}, v{vSt}")
    a("s_nop 0")
    a(f"v_mul_f32 v{vSt+1}, v{vSt}, v{vSt+1}")
    a(f"v_mov_b32 v{vSt}, v{vP}")
    rowred(vSt + 1)
    swapop(vSt + 1, vP + 1, 16, "add")
    a(f"v_rcp_f32 v{vSt+1}, v{vSt+1}")
    a("s_branch L_vloop")
    lab("L_vlast")
    delay("vlast")
    G = vX1 + 16
    a(f"buffer_load_dwordx2 {v2(G+4)}, v{vGm}, {srd(rWS)}, 0 offen offset:512 sc1")
    for i in range(4): a(f"global_load_dwordx4 {a4(aWO+4*i)}, v{vWoA}, {sp(sWOp)} offset:{1024*i} {KVF}")
    a(f"s_cmp_lt_u32 s{sP}, {0 if NOFFN else 56}")
    a(f"s_cselect_b32 s{rWQ+2}, 1835008, 0")
    a(f"v_lshrrev_b32 v{vT0}, 2, v{vL}")
    a(f"s_movk_i32 s{sT1}, 3584")
    a(f"v_mul_u32_u24 v{vT0}, s{sT1}, v{vT0}")
    a(f"v_and_b32 v{vT1}, 0x30, v{vKo}")
    a(f"s_mul_i32 s{sT1}, s{sW}, {128*3584}")
    a(f"s_lshl_b32 s{sT2}, s{sP}, 6")
    a(f"s_add_u32 s{sT1}, s{sT1}, s{sT2}")
    a(f"v_add3_u32 v{vT0}, v{vT0}, v{vT1}, s{sT1}")
    FPS = opts.get("fps", 1)
    def dn_addr():
        a(f"v_lshl_add_u32 v{vT1}, v{vG}, 10, v{vC16}")
        a(f"s_lshl_b32 s{sT1}, s{sP}, 15")
        a(f"s_lshl_b32 s{sT2}, s{sW}, 8")
        a(f"s_add_u32 s{sT1}, s{sT1}, s{sT2}")
        a(f"v_add_u32 v{vT1}, s{sT1}, v{vT1}")
    if FPS > 1: dn_addr()
    softmax()
    fl = [("g", i) for i in range(8)] + [("u", i) for i in range(8)] + [("d", i) for i in range(8)]
    nis = [5]
    def fissue(n):
        for kind, i in fl[:n]:
            if i == 0:
                p = {"g": sWGp, "u": sWUp, "d": sWDp}[kind]
                a(f"s_mov_b32 s{rWQ}, s{p}")
                a(f"s_mov_b32 s{rWQ+1}, s{p+1}")
            if kind == "d":
                a(f"s_mov_b32 s{sT0}, {4096*i}")
                a(f"buffer_load_dwordx4 {a4(aDn+4*i)}, v{vT1}, {srd(rWQ)}, s{sT0} offen {KVF}")
            else:
                a(f"s_mov_b32 s{sT0}, {16*3584*i}")
                a(f"buffer_load_dwordx4 {a4(aGU+(32 if kind == 'u' else 0)+4*i)}, v{vT0}, {srd(rWQ)}, s{sT0} offen {FFF}")
            nis[0] += 1
        del fl[:n]
    vecmat(mkAp, 16, lambda i: v4(vR + 4 * i), vO, False, lambda i: a(f"s_waitcnt vmcnt({15 - i + nis[0]})"), lambda i: fissue(FPS))
    a(f"s_add_u32 s{sT}, s{sT}, 1")
    lab("L_tail")
    a(f"s_mov_b32 s{sFin}, 1")
    stamp(4)
    if NOTAIL:
        stamp(5); stamp(6)
        a("s_branch L_fin")
    a(f"s_cmp_lg_u32 s{sPh}, 0")
    a("s_cbranch_scc1 L_comb1")
    lab("L_comb")
    a(f"s_lshl_b32 s{sT0}, s{sW}, 3")
    a(f"s_add_u32 s{sT0}, s{sT0}, s{sPh}")
    a(f"v_mov_b32 v{vP+3}, s{sT0}")
    a(f"v_add_u32 v{vP+2}, s{sPh}, v{vLo}")
    a(f"v_mov_b32 v{vP}, v{vM}")
    a(f"v_mov_b32 v{vP+1}, v{vLs}")
    a(f"ds_write_b128 v{vP+2}, {v4(vO)} offset:{OP}")
    a(f"ds_write_b64 v{vP+3}, {v2(vP)} offset:{MLS}")
    a(f"v_and_b32 v{vP+4}, 3, v{vL}")
    a(f"v_lshl_add_u32 v{vP+4}, v{vP+4}, 3, s{sPh}")
    a(f"v_and_b32 v{vP+5}, 0x1ff, v{vKo}")
    a(f"v_add_u32 v{vP+5}, s{sPh}, v{vP+5}")
    a("s_waitcnt lgkmcnt(0)")
    a("s_barrier")
    a(f"s_cmp_lg_u32 s{sW}, 0")
    a("s_cbranch_scc1 L_comb_done")
    CB = vX1
    a(f"ds_read_b64 {v2(vP)}, v{vP+4} offset:{MLS}")
    for w in range(4):
        a(f"ds_read_b128 {v4(CB+4*w)}, v{vP+5} offset:{OP+512*w}")
    a(f"s_waitcnt lgkmcnt({0 if STAMP else 4})")
    mx, e, ew, oo = vP + 2, vP + 3, vP + 4, vP + 8
    a(f"v_max_f32_dpp v{mx}, v{vP}, v{vP} quad_perm:[2,3,0,1] {FULL}")
    a("s_nop 1")
    a(f"v_max_f32_dpp v{mx}, v{mx}, v{mx} quad_perm:[1,0,3,2] {FULL}")
    a(f"v_sub_f32 v{ew}, v{vP}, v{mx}")
    a(f"v_mul_f32 v{ew}, {f32(LOG2E)}, v{ew}")
    a(f"v_exp_f32 v{ew}, v{ew}")
    a("s_nop 0")
    a(f"v_mul_f32 v{e}, v{ew}, v{vP+1}")
    a("s_waitcnt lgkmcnt(0)")
    for r in range(4):
        a(f"v_mul_f32_dpp v{oo+r}, v{ew}, v{CB+r} quad_perm:[0,0,0,0] {FULL}")
    a(f"v_add_f32_dpp v{e}, v{e}, v{e} quad_perm:[2,3,0,1] {FULL}")
    for w in range(1, 4):
        for r in range(4):
            a(f"v_fmac_f32_dpp v{oo+r}, v{ew}, v{CB+4*w+r} quad_perm:[{w},{w},{w},{w}] {FULL}")
    a(f"v_add_f32_dpp v{oo+1}, v{e}, v{e} quad_perm:[1,0,3,2] row_mask:0xc bank_mask:0xf")
    a(f"v_mov_b32_dpp v{oo}, v{mx} quad_perm:[0,1,2,3] row_mask:0xc bank_mask:0xf")
    for r in range(4): a(f"v_min_u32 v{oo+r}, -2, v{oo+r}")
    a(f"buffer_store_dwordx4 {v4(oo)}, v{vPa}, {srd(rWS)}, s{sPart} offen sc1")
    lab("L_comb_done")
    a(f"s_movk_i32 s{sPh}, {PHOFF}")
    a(f"s_add_u32 s{sT0}, s2, 256")
    a(f"s_lshl_b32 s{sPart}, s{sT0}, 10")
    a(f"v_mov_b32 v{vM}, v{vSt}")
    a(f"v_mov_b32 v{vSc}, v{vSt+1}")
    for r in range(4): a(f"v_mov_b32 v{vO+r}, 0")
    a(f"v_and_b32 v{vPa}, 0x1ff, v{vLo}")
    a(f"v_lshrrev_b32 v{vLs}, 1, v{vG}")
    a(f"v_lshl_add_u32 v{vPa}, v{vLs}, 23, v{vPa}")
    a(f"s_cmp_eq_u32 s{sFin}, 0")
    a("s_cbranch_scc1 L_vloop")
    lab("L_comb1")
    a("s_nop 5")
    a(f"ds_write_b128 v{vLo}, {v4(vO)} offset:{OP+PHOFF}")
    a("s_waitcnt lgkmcnt(0)")
    a("s_barrier")
    a(f"s_cmp_lg_u32 s{sW}, 0")
    a("s_cbranch_scc1 L_gather")
    for w in range(1, 4):
        a(f"ds_read_b128 {v4(CB+4*w)}, v{vLo} offset:{OP+PHOFF+512*w}")
    for w in range(1, 4):
        a(f"s_waitcnt lgkmcnt({0 if STAMP else 3-w})")
        for r in range(4): a(f"v_add_f32 v{vO+r}, v{vO+r}, v{CB+4*w+r}")
    for r in range(4): a(f"v_min_u32 v{CB+r}, -2, v{vO+r}")
    a(f"buffer_store_dwordx4 {v4(CB)}, v{vPa}, {srd(rWS)}, s{sPart} offen {HS}")
    lab("L_gather")
    a(f"s_cmp_ge_u32 s{sP}, {0 if NOFFN else 56}")
    a("s_cbranch_scc1 L_gather2")
    if FPS == 1:
        dn_addr()
        assert [k for k, _ in fl] == ["d"] * 8
        fissue(8)
    assert not fl
    c("FFN stage 1")
    a(f"s_lshl_b32 s{sT0}, s{sW}, 14")
    a(f"v_add_u32 v{vT0}, s{sT0}, v{vKo}")
    a("s_waitcnt vmcnt(8)")
    for i in range(16):
        a(f"ds_write_b128 v{vT0}, {a4(aGU+4*i)} offset:{GU+1024*i}")
    a(f"v_lshrrev_b32 v{vT0}, 2, v{vC}")
    a(f"v_lshl_add_u32 v{vT0}, v{vG}, 3, v{vT0}")
    a(f"v_lshlrev_b32 v{vT0}, 6, v{vT0}")
    a(f"v_and_b32 v{vT1}, 1, v{vC}")
    a(f"v_lshl_add_u32 v{vT0}, v{vT1}, 3, v{vT0}")
    a(f"v_bfe_u32 v{vIdx}, v{vC}, 1, 1")
    a(f"v_lshl_add_u32 v{vT0}, v{vIdx}, 13, v{vT0}")
    a(f"v_add_u32 v{vT0}, s{sT0}, v{vT0}")
    a(f"v_lshlrev_b32 v{vT1}, 10, v{vT1}")
    a(f"v_lshl_add_u32 v{vT1}, v{vG}, 4, v{vT1}")
    a(f"s_lshl_b32 s{sT0}, s{sW}, 8")
    a(f"v_add_u32 v{vT1}, s{sT0}, v{vT1}")
    a("s_waitcnt lgkmcnt(0)")
    for t in range(4):
        a(f"ds_read_b128 {v4(vP+4*t)}, v{vT1} offset:{XN+64*t}")
    DD = vX1 + 32
    for cg in range(4):
        for t in range(4):
            for hh in range(2):
                a(f"ds_read_b64_tr_b16 {v2(vR+16*cg+4*t+2*hh)}, v{vT0} offset:{GU+2048*t+256*hh+16*cg}")
        a("s_waitcnt lgkmcnt(0)")
        for t in range(4):
            a(f"v_mfma_f32_16x16x32_bf16 {v4(DD+4*cg)}, {v4(vP+4*t)}, {v4(vR+16*cg+4*t)}, {'0' if t == 0 else v4(DD+4*cg)}")
    a(f"s_lshl_b32 s{sT0}, s{sW}, 9")
    a(f"v_lshl_add_u32 v{vT0}, v{vC}, 2, s{sT0}")
    a("s_nop 7")
    for cg in range(4):
        a(f"ds_write_b32 v{vT0}, v{DD+4*cg} offset:{FP+128*cg}")
        a(f"ds_write_b32 v{vT0}, v{DD+4*cg+1} offset:{FP+128*cg+64}")
    a("s_waitcnt lgkmcnt(0)")
    a("s_barrier")
    c("FFN stage 2")
    for w in range(4):
        a(f"ds_read2st64_b32 {v2(vP+2*w)}, v{vL4} offset0:{(FP+512*w)//256} offset1:{(FP+512*w)//256+1}")
    a(f"v_lshrrev_b32 v{vT0}, 3, v{vC}")
    a(f"v_lshlrev_b32 v{vT0}, 6, v{vT0}")
    a(f"v_lshl_add_u32 v{vT0}, v{vG}, 2, v{vT0}")
    a("s_waitcnt lgkmcnt(0)")
    for w in range(1, 4):
        a(f"v_add_f32 v{vP}, v{vP}, v{vP+2*w}")
        a(f"v_add_f32 v{vP+1}, v{vP+1}, v{vP+2*w+1}")
    for j in range(2):
        rnd_bf16(vP + j, vP + j)
        silu(vP + 2 + j, vP + j)
        a(f"v_mul_f32_dpp v{vP+2+j}, v{vP+j}, v{vP+2+j} row_ror:8 {FULL}")
        a(f"v_cvt_pk_bf16_f32 v{vP+2+j}, v{vP+2+j}, v{vP+2+j}")
    for i in range(8):
        cg = i >> 1
        a(f"ds_bpermute_b32 v{vP+4+i}, v{vT0}, v{vP+2+(cg>>1)} offset:{((cg&1)*32+4*(i&1))*4}")
    a("s_waitcnt lgkmcnt(0)")
    a("s_waitcnt vmcnt(0)")
    def mkAh(i, A):
        for r in range(4):
            a(f"v_and_b32 v{A+r}, v{vP+4+i}, v{vMask+r}")
    vecmat(mkAh, 8, lambda i: a4(aDn + 4 * i), DD, True)
    a(f"s_lshl_b32 s{sT0}, s{sP}, 7")
    a("s_nop 6")
    for r in range(4): a(f"v_min_u32 v{DD+r}, -2, v{DD+r}")
    a(f"buffer_store_dwordx4 {v4(DD)}, v{vFo}, {srd(rWS)}, s{sT0} offen sc1")
    lab("L_gather2")
    delay("gather")
    stamp(5)
    GS = [vR + 4 * j for j in range(NC)] + [G]
    def g_loads(B=None):
        if B is None: B = GS[0] if NC > 1 else G
        a(f"buffer_load_dwordx4 {v4(B)}, v{vGp}, {srd(rWS)}, 0 offen {HL}")
    def m_loads():
        a(f"buffer_load_dwordx2 {v2(G+4)}, v{vGm}, {srd(rWS)}, 0 offen offset:512 sc1")
    g_loads()
    a("s_waitcnt vmcnt(1)")
    a(f"v_mov_b32 v{G+6}, 0")
    a("s_mov_b32 exec_lo, 0x00ff00ff")
    a("s_mov_b32 exec_hi, 0x00ff00ff")
    poll("L_pm", m_loads, vP, G + 4, 3, first_wait=False)
    P8 = ("quad_perm:[1,0,3,2]", "quad_perm:[2,3,0,1]", "row_half_mirror")
    wt = G + 6
    for n, p in enumerate(P8):
        s_ = G + 4 if n == 0 else wt
        a("s_nop 1")
        a(f"v_max_f32_dpp v{wt}, v{s_}, v{s_} {p} {FULL}")
    a(f"v_sub_f32 v{wt}, v{G+4}, v{wt}")
    a(f"v_mul_f32 v{wt}, {f32(LOG2E)}, v{wt}")
    a(f"v_exp_f32 v{wt}, v{wt}")
    a("s_nop 0")
    a(f"v_mul_f32 v{G+4}, v{wt}, v{G+5}")
    for p in P8:
        a("s_nop 1")
        a(f"v_add_f32_dpp v{G+4}, v{G+4}, v{G+4} {p} {FULL}")
    a(f"v_rcp_f32 v{G+4}, v{G+4}")
    a(f"v_mov_b32 v{G+5}, 1.0")
    a(f"v_mul_f32 v{wt}, v{wt}, v{G+4}")
    a("s_nop 0")
    a(f"v_mov_b32_dpp v{wt}, v{G+5} quad_perm:[0,1,2,3] row_mask:0xf bank_mask:0xc")
    if NC > 1: ppoll("L_pg", g_loads, vP, GS, 4, 1, True)
    else: poll("L_pg", g_loads, vP, G, 4, back=opts.get("bg", 0), many=opts.get("mg"))
    if opts.get("tstamp"): stamp(1)
    for r in range(4): a(f"v_mul_f32 v{G+r}, v{wt}, v{G+r}")
    for p in P8:
        for r in range(4):
            a(f"v_add_f32_dpp v{G+r}, v{G+r}, v{G+r} {p} {FULL}")
    for r in range(4): a(f"v_cvt_pk_bf16_f32 v{G+r}, v{G+r}, v{G+r}")
    def mkAo(i, A):
        for r in range(4):
            a(f"v_and_b32 v{A+r}, v{G+i}, v{vMask+r}")
    vecmat(mkAo, 4, lambda i: a4(aWO + 4 * i), vO, True)
    a(f"s_lshl_b32 s{sT0}, s{sW}, 10")
    a(f"v_add_u32 v{vP}, s{sT0}, v{vKo}")
    a("s_nop 5")
    a(f"ds_write_b128 v{vP}, {v4(vO)} offset:{QP}")
    if opts.get("tstamp"): stamp(2)
    a("s_waitcnt lgkmcnt(0)")
    a("s_barrier")
    a(f"s_cmp_lg_u32 s{sW}, 0")
    a("s_cbranch_scc1 L_ydone")
    for w in range(1, 4):
        a(f"ds_read_b128 {v4(G+4*w)}, v{vKo} offset:{QP+1024*w}")
    for w in range(1, 4):
        a(f"s_waitcnt lgkmcnt({0 if STAMP else 3-w})")
        for r in range(4): a(f"v_add_f32 v{vO+r}, v{vO+r}, v{G+4*w+r}")
    for r in range(4): a(f"v_min_u32 v{vO+r}, -2, v{vO+r}")
    a(f"buffer_store_dwordx4 {v4(vO)}, v{vYo}, {srd(rWS)}, 0 offen {HS}")
    lab("L_ydone")
    stamp(6)
    a(f"s_cmp_eq_u32 s{sCons}, 0")
    a("s_cbranch_scc1 L_fin")
    Y = vF
    a(f"s_mov_b32 s{sT2}, {WS_F - WS_Y}")
    a(f"s_cmp_eq_u32 s{sW}, 3")
    a(f"s_cselect_b32 s{sT1}, {WS_SIZE}, s{sT2}")
    YS = [vR + 32 + 8 * j for j in range(NC)] + [Y]
    def y_loads(B=None):
        if B is None: B = YS[0] if NC > 1 else Y
        for i in range(2):
            a(f"buffer_load_dwordx4 {v4(B+4*i)}, v{vGy}, {srd(rWS)}, 0 offen offset:{i*1024} {HL}")
    def f_loads():
        a(f"buffer_load_dwordx4 {v4(Y+8)}, v{vGy}, {srd(rWS)}, s{sT2} offen sc1")
        a(f"buffer_load_dwordx4 {v4(Y+12)}, v{vGy}, {srd(rWS)}, s{sT1} offen offset:1024 sc1")
    f_loads()
    y_loads()
    a(f"v_lshlrev_b32 v{vT2}, 16, v{vT2}")
    a(f"v_bfe_u32 v{vT0}, v{vL}, 3, 1")
    a(f"v_lshl_add_u32 v{vXo}, v{vT0}, 20, v{vXo}")
    a("s_waitcnt vmcnt(2)")
    if not NOFFN: poll("L_pf", f_loads, vP, Y + 8, 8, first_wait=False)
    for r in range(4): a(f"v_add_f32 v{Y+8+r}, v{Y+8+r}, v{Y+12+r}")
    reduce345(Y + 8)
    a(f"ds_write_b32 v{vCl}, v{Y+8} offset:{CF}")
    if NC > 1: ppoll("L_py", y_loads, vP, YS, 8, 2, True)
    else: poll("L_py", y_loads, vP, Y, 8, back=opts.get("by", 0), many=opts.get("my"))
    if opts.get("tstamp"): stamp(3)
    for r in range(4): a(f"v_add_f32 v{Y+r}, v{Y+r}, v{Y+4+r}")
    reduce345(Y)
    a(f"ds_write_b32 v{vCl}, v{Y} offset:{CY}")
    a("s_waitcnt lgkmcnt(0)")
    a("s_barrier")
    a(f"s_cmp_lg_u32 s{sW}, 0")
    a("s_cbranch_scc1 L_fin")
    Z = vF + 16
    for w in range(4):
        a(f"ds_read_b32 v{Z+w}, v{vCl} offset:{CF+256*w}")
    for w in range(1, 4):
        a(f"ds_read_b32 v{Z+4+w}, v{vCl} offset:{CY+256*w}")
    a(f"s_waitcnt lgkmcnt({0 if STAMP else 3})")
    a(f"v_add_f32 v{Z}, v{Z}, v{Z+1}")
    a(f"v_add_f32 v{Z+2}, v{Z+2}, v{Z+3}")
    a(f"v_add_f32 v{Z}, v{Z}, v{Z+2}")
    rnd_bf16(Z, Z)
    a(f"v_mul_f32 v{Z+1}, {f32(-LOG2E)}, v{Z}")
    a(f"v_exp_f32 v{Z+1}, v{Z+1}")
    a("s_waitcnt lgkmcnt(0)")
    a(f"v_add_f32 v{Y}, v{Y}, v{Z+5}")
    a(f"v_add_f32 v{Z+1}, 1.0, v{Z+1}")
    a(f"v_rcp_f32 v{Z+1}, v{Z+1}")
    a(f"v_add_f32 v{Z+6}, v{Z+6}, v{Z+7}")
    a(f"v_add_f32 v{Y}, v{Y}, v{Z+6}")
    a(f"v_mul_f32 v{Z+1}, v{Z}, v{Z+1}")
    a(f"v_cvt_pk_bf16_f32 v{Y}, v{Y}, v{Z+1}")
    a(f"v_and_b32 v{Z+1}, 0xffff0000, v{Y}")
    a(f"v_lshlrev_b32 v{Y}, 16, v{Y}")
    a(f"v_mul_f32 v{Y}, v{Y}, v{Z+1}")
    rnd_bf16(Y, Y)
    a(f"v_add_f32 v{Y}, v{Y}, v{vT2}")
    a(f"v_cvt_pk_bf16_f32 v{Y}, v{Y}, v{Y}")
    a(f"buffer_store_short v{Y}, v{vXo}, {srd(rOUT)}, 0 offen {opts.get('of', '')}")
    lab("L_fin")
    if STAMP:
        stamp(7)
        a("s_waitcnt lgkmcnt(0)")
        a(f"s_lshl_b32 s{sT0}, s2, 2")
        a(f"s_add_u32 s{sT0}, s{sT0}, s{sW}")
        a(f"s_lshl_b32 s{sT0}, s{sT0}, 5")
        a(f"s_add_u32 s{sT0}, s{sT0}, {WS_DBG}")
        for k in range(8): a(f"v_mov_b32 v{vP+4+k}, s{sSt+2*k}")
        a(f"v_lshl_or_b32 v{vP+4}, v{vP+4}, 8, s{sT}")
        a(f"buffer_store_dwordx4 {v4(vP+4)}, v{vL23}, {srd(rWS)}, s{sT0} offen")
        a(f"buffer_store_dwordx4 {v4(vP+8)}, v{vL23}, {srd(rWS)}, s{sT0} offen offset:16")
    lab("L_end")
    a("s_endpgm")
    body = "\n".join(o)
    txt = HEADER + f"; @launch grid=(256,1,1) block=(256,1,1) lds={LDS}\n"
    txt += """;
"""
    txt += f""".amdgcn_target "amdgcn-amd-amdhsa--gfx950"
.text
.globl {KNAME}
.p2align 8
.type {KNAME},@function
{body}
.section .rodata,"a"
.p2align 6
.amdhsa_kernel {KNAME}
  .amdhsa_next_free_vgpr 448
  .amdhsa_next_free_sgpr 102
  .amdhsa_accum_offset 256
  .amdhsa_group_segment_fixed_size 0
  .amdhsa_kernarg_size 96
  .amdhsa_user_sgpr_count 2
  .amdhsa_user_sgpr_kernarg_segment_ptr 1
  .amdhsa_system_sgpr_workgroup_id_x 1
  .amdhsa_float_denorm_mode_32 3
.end_amdhsa_kernel
"""
    return txt

if __name__ == "__main__":
    out = sys.argv[1]
    opts = eval(sys.argv[2]) if len(sys.argv) > 2 else {}
    open(out, "w").write(gen(opts))
```

```python
import sys, struct

KNAME = "recurrent_scan__mha_block_cached__swiglu_ffn__decode_kernel"
def f32(x): return "0x%08x" % struct.unpack("<I", struct.pack("<f", x))[0]
HEADER = open("recurrent_scan__mha_block_cached__swiglu_ffn__decode.s.ref").read().split("; Override launch geometry")[0]
LOG2E = 1.4426950408889634

def gen(opts):
    o = []
    def a(s): o.append("  " + s)
    def lab(s): o.append(s + ":")
    def c(s): o.append("  ; " + s)
    KVF = opts.get("kvflags", "nt")
    WQF = opts.get("wqflags", "")
    FFF = opts.get("ffnflags", "")
    FSP = opts.get("fsp", 2)
    STAMP = opts.get("stamp", False)
    CS = opts.get("cs", "sc1")
    HS = opts.get("hs", "sc1"); HL = opts.get("hl", "sc1")
    S2 = opts.get("S2", 0)
    NH = opts.get("nh", 8)
    FT = opts.get("ft", -14)
    NX = opts.get("nx", 2)
    MIX = opts.get("mix", "bbq"); NPRE = opts.get("npre", 16); LAG = opts.get("lag", 18); NPOST = opts.get("npost", 12)
    NOFFN = opts.get("noffn", False); NOTAIL = opts.get("notail", False)
    NOQ = opts.get("noq", False); NOSC = opts.get("nosc", False); NOCLR = opts.get("noclr", False)
    NOGU = opts.get("nogu", False); NOFST = opts.get("nofst", False); GUCO = opts.get("guco", False)
    FSTEP = opts.get("fstep", 1); F0 = opts.get("f0", 2)
    TS = opts.get("ts", 18); JB = opts.get("jb", (16, 17, 21)); HM = opts.get("hm", 1)
    IB = opts.get("ib", (12, 13, 14, 15))
    WB = opts.get("wb", (10, 11))
    assert sorted(list(JB) + [TS, TS + 1, TS + 2] + list(IB) + list(WB)) == list(range(10, 22))
    def ioff(i): return sum(((i >> j) & 1) << p for j, p in enumerate(IB))
    NK0 = 8 - NX
    NY = opts.get("ny", 2)
    assert NX == 2 and NY in (0, 2)
    NK = NK0 + 8 - NY
    HF = 4
    SV = 8 + S2
    assert 0 <= S2 <= 7
    sX, sKp, sVp, sWQp, sWOp, sWGp, sWUp = 4, 6, 8, 10, 12, 16, 18
    sWDp, sOUTp, sDBGp, sWSp = 20, 22, 24, 26
    rS, rWQ, rWS, rDBG, rOUT = 28, 36, 40, 44, 48
    sBase0, sScB, sFin, sNa, sNb = 32, 33, 34, 35, 59
    sW, sXc, sKk, sH1, sJ1, sBase2, sPart, sPh = 52, 53, 54, 55, 56, 57, 58, 60
    sRot, sFirst2 = 61, 62
    sT, sN0, sN1, sCnt = 63, 64, 65, 66
    sCC, sAA = 68, 70
    sT0, sT1, sT2 = 72, 73, 74
    sP, sCons, sOnes, sTm = 76, 77, 79, 80
    sCid = sKk
    sC4k, sF1, sSpin = 81, 82, 83
    sSt = 84
    def srd(r): return f"s[{r}:{r+3}]"
    def sp(r): return f"s[{r}:{r+1}]"
    vL, vG, vC, vKo, vYo, vL23, vFlo, vM, vLs = 0, 1, 2, 3, 4, 5, 6, 7, 8
    vT0, vT1, vT2 = 9, 10, 11
    vQ, vMask, vA0, vA1, vO = 12, 16, 20, 24, 28
    vP = 32
    vC16, vLo, vIdx, vSa, vFl, vXo, vFo, vL4 = 48, 49, 50, 51, 52, 53, 54, 55
    vQ1 = 56
    vWoA, vPa, vSn, vL2 = 60, 61, 62, 63
    vR, vX1, vX2 = 64, 128, 192
    vF = 192
    aWQ, aWO, aDn, aGU = 0, 64, 0, 80
    def v4(r): return f"v[{r}:{r+3}]"
    def v2(r): return f"v[{r}:{r+1}]"
    def a4(r): return f"a[{r}:{r+3}]"
    XN, FP, QP, CF, CY, OP, MLS = 0, 2048, 4096, 8192, 9216, 10240, 12288
    PHOFF = 2560
    TK, SCL = 15104, 15616
    GU = SCL + 8192
    LDS = GU + 65536
    WS_ST = 0x90000
    WS_PART, WS_CNT, WS_Y, WS_F, WS_DBG, WS_SC = 0, 0x80000, 1 << 20, 2 << 20, 3 << 20, 4 << 20
    WS_SIZE = 8 << 20
    FULL = "row_mask:0xf bank_mask:0xf"
    KVB = 256 << 20

    def rnd_bf16(dst, src):
        a(f"v_cvt_pk_bf16_f32 v{dst}, v{src}, v{src}")
        a(f"v_lshlrev_b32 v{dst}, 16, v{dst}")
    def rowred(v, op="add"):
        for n in (8, 4, 2, 1):
            a("s_nop 1")
            a(f"v_{op}_f32_dpp v{v}, v{v}, v{v} row_ror:{n} {FULL}")
    def swapadd(v, t, which):
        a(f"v_mov_b32 v{t}, v{v}")
        a("s_nop 1")
        a(f"v_permlane{which}_swap_b32 v{t}, v{v}")
        a("s_nop 1")
        a(f"v_add_f32 v{v}, v{v}, v{t}")
    def vecmat(mkA, n, B, acc, first_zero, wait=None, post=None):
        A_ = lambda i: vA0 if i % 2 == 0 else vA1
        mkA(0, A_(0))
        for i in range(n):
            if i < n - 1: mkA(i + 1, A_(i + 1))
            else: a("s_nop 1")
            if wait: wait(i)
            cc = "0" if (first_zero and i == 0) else v4(acc)
            a(f"v_mfma_f32_16x16x32_bf16 {v4(acc)}, {v4(A_(i))}, {B(i)}, {cc}")
            if post: post(i)
    def reduce345(r):
        a("s_nop 1")
        for k in range(4):
            a(f"v_add_f32_dpp v{r+k}, v{r+k}, v{r+k} row_ror:8 {FULL}")
        a("s_nop 1")
        a(f"v_permlane16_swap_b32 v{r}, v{r+1}")
        a(f"v_permlane16_swap_b32 v{r+2}, v{r+3}")
        a("s_nop 1")
        a(f"v_add_f32 v{r}, v{r}, v{r+1}")
        a(f"v_add_f32 v{r+2}, v{r+2}, v{r+3}")
        a("s_nop 1")
        a(f"v_permlane32_swap_b32 v{r}, v{r+2}")
        a("s_nop 1")
        a(f"v_add_f32 v{r}, v{r}, v{r+2}")
    def silu(dst, src):
        a(f"v_mul_f32 v{dst}, {f32(-LOG2E)}, v{src}")
        a(f"v_exp_f32 v{dst}, v{dst}")
        a("s_nop 0")
        a(f"v_add_f32 v{dst}, 1.0, v{dst}")
        a(f"v_rcp_f32 v{dst}, v{dst}")
        a("s_nop 0")
        a(f"v_mul_f32 v{dst}, v{src}, v{dst}")
        rnd_bf16(dst, dst)
    def maxchain(t, r0, n):
        a(f"v_max3_u32 v{t}, v{r0}, v{r0+1}, v{r0+2}")
        r = 3
        while r + 1 < n:
            a(f"v_max3_u32 v{t}, v{r0+r}, v{r0+r+1}, v{t}"); r += 2
        if r < n: a(f"v_max_u32 v{t}, v{r0+r}, v{t}")
    def poll(name, loads, t, r0, n, first_wait=True, back=0, many=None):
        lab(name)
        if first_wait: a("s_waitcnt vmcnt(0)")
        lab(name + "_chk")
        maxchain(t, r0, n)
        a(f"v_cmp_eq_u32 vcc, -1, v{t}")
        a("s_nop 4")
        a(f"s_cbranch_vccz {name}_done")
        a(f"s_sub_u32 s{sSpin}, s{sSpin}, 1")
        a(f"s_cbranch_scc1 {name}_done")
        a("s_mov_b64 exec, vcc")
        if many:
            a(f"s_bcnt1_i32_b64 s{sTm}, vcc")
            a(f"s_cmp_le_u32 s{sTm}, {many[0]}")
            a(f"s_cbranch_scc1 {name}_go")
            a(f"s_sleep {many[1]}")
            lab(name + "_go")
        if back: a(f"s_sleep {back}")
        loads()
        a("s_waitcnt vmcnt(0)")
        a(f"s_branch {name}_chk")
        lab(name + "_done")
        a("s_mov_b64 exec, -1")
    NC = opts.get("nc", 1); PSL = opts.get("psl", 4)
    sMk = [68, 70, 34 + 0]
    sMk = [68, 70, 66][:NC]
    def ppoll(name, loads, t, sets, n, nl, first_issued):
        for cx in range(NC):
            a(f"s_mov_b64 {sp(sMk[cx])}, -1")
            if cx == 0 and first_issued: continue
            if cx and PSL: a(f"s_sleep {PSL}")
            loads(sets[cx])
        lab(name)
        for cx in range(NC):
            a(f"s_waitcnt vmcnt({nl*(NC-1)})")
            a(f"s_mov_b64 exec, {sp(sMk[cx])}")
            maxchain(t, sets[cx], n)
            a(f"v_cmp_eq_u32 vcc, -1, v{t}")
            a("s_nop 4")
            a(f"s_cbranch_vccz {name}_ok{cx}")
            a(f"s_mov_b64 {sp(sMk[cx])}, vcc")
            a("s_mov_b64 exec, vcc")
            loads(sets[cx])
            if opts.get("psl2", 0): a(f"s_sleep {opts['psl2']}")
        a(f"s_sub_u32 s{sSpin}, s{sSpin}, 1")
        a(f"s_cbranch_scc0 {name}")
        a(f"s_branch {name}_ok0")
        for cx in range(NC - 1, 0, -1):
            lab(f"{name}_ok{cx}")
            a("s_mov_b64 exec, -1")
            for r in range(n): a(f"v_mov_b32 v{sets[NC]+r}, v{sets[cx]+r}")
            a(f"s_branch {name}_done")
        lab(f"{name}_ok0")
        a("s_mov_b64 exec, -1")
        for r in range(n): a(f"v_mov_b32 v{sets[NC]+r}, v{sets[0]+r}")
        lab(f"{name}_done")
    JB2 = opts.get("jb2", JB); TS2 = opts.get("ts2", TS)
    assert sorted(list(JB2) + [TS2, TS2 + 1, TS2 + 2]) == sorted(list(JB) + [TS, TS + 1, TS + 2])
    def jdep(dst, src, tmp, bits=None):
        for j, p in enumerate(bits or JB):
            d = dst if j == 0 else tmp
            a(f"s_bfe_u32 s{d}, s{src}, {0x10000 + j}")
            a(f"s_lshl_b32 s{d}, s{d}, {p}")
            if j: a(f"s_or_b32 s{dst}, s{dst}, s{tmp}")
    def jext(dst, src, tmp, sh):
        for j, p in enumerate(JB):
            d = dst if j == 0 else tmp
            a(f"s_bfe_u32 s{d}, s{src}, {0x10000 + p}")
            a(f"s_lshl_b32 s{d}, s{d}, {sh + j}")
            if j: a(f"s_or_b32 s{dst}, s{dst}, s{tmp}")
    dl = [0]
    def delay(point):
        for (pt, mod, rem, wv, n) in opts.get("stress", []):
            if pt != point: continue
            dl[0] += 1; L = f"L_dl{dl[0]}"
            a(f"s_and_b32 s100, s2, {mod}")
            a(f"s_cmp_lg_u32 s100, {rem}")
            a(f"s_cbranch_scc1 {L}e")
            if wv is not None:
                a(f"s_cmp_lg_u32 s{sW}, {wv}")
                a(f"s_cbranch_scc1 {L}e")
            a(f"s_mov_b32 s100, {n}")
            lab(L)
            a("s_sleep 127")
            a("s_sub_u32 s100, s100, 1")
            a(f"s_cbranch_scc0 {L}")
            lab(L + "e")
    def trace(base):
        if not opts.get("trace"): return
        a("s_memrealtime s[100:101]")
        a(f"s_lshl_b32 s{sT0}, s2, 2")
        a(f"s_add_u32 s{sT0}, s{sT0}, s{sW}")
        a(f"s_mul_i32 s{sT0}, s{sT0}, 48")
        a(f"s_add_u32 s{sT0}, s{sT0}, s{sT}")
        a(f"s_lshl_b32 s{sT0}, s{sT0}, 2")
        a(f"s_add_u32 s{sT0}, s{sT0}, {WS_DBG + 65536 + 4*base}")
        a("s_waitcnt lgkmcnt(0)")
        a(f"v_mov_b32 v{vT0}, s100")
        a(f"s_cmp_lg_u32 s{sW}, 0")
        a(f"s_cselect_b32 s{sT0}, {WS_SIZE}, s{sT0}")
        a(f"buffer_store_dword v{vT0}, v{vL23}, {srd(rWS)}, s{sT0} offen")
    def stamp(k):
        if STAMP: a(f"s_memrealtime s[{sSt+2*k}:{sSt+2*k+1}]")
    def swapop(v, t, which, op):
        a(f"v_mov_b32 v{t}, v{v}")
        a("s_nop 1")
        a(f"v_permlane{which}_swap_b32 v{t}, v{v}")
        a("s_nop 1")
        a(f"v_{op}_f32 v{v}, v{v}, v{t}")
    def stats(src, m, l):
        for r in range(4):
            a(f"v_lshlrev_b32 v{vP+2*r}, 16, v{src+r}")
            a(f"v_and_b32 v{vP+2*r+1}, 0xffff0000, v{src+r}")
        a(f"v_max3_f32 v{m}, v{vP}, v{vP+1}, v{vP+2}")
        a(f"v_max3_f32 v{m}, v{vP+3}, v{vP+4}, v{m}")
        a(f"v_max3_f32 v{m}, v{vP+5}, v{vP+6}, v{m}")
        a(f"v_max_f32 v{m}, v{vP+7}, v{m}")
        rowred(m, "max")
        swapop(m, vP + 8, 16, "max")
        swapop(m, vP + 8, 32, "max")
        for r in range(8): a(f"v_sub_f32 v{vP+r}, v{vP+r}, v{m}")
        for r in range(8): a(f"v_mul_f32 v{vP+r}, {f32(LOG2E)}, v{vP+r}")
        for r in range(8): a(f"v_exp_f32 v{vP+r}, v{vP+r}")
        for st in (4, 2):
            for r in range(st): a(f"v_add_f32 v{vP+r}, v{vP+r}, v{vP+st+r}")
        a(f"v_add_f32 v{l}, v{vP}, v{vP+1}")
        rowred(l)
        swapop(l, vP + 8, 16, "add")
        swapop(l, vP + 8, 32, "add")
    def kvload(dst, off, base=None):
        if base is None: base = sN0
        if off == 0:
            a(f"buffer_load_dwordx4 {dst}, v{vKo}, {srd(rS)}, s{base} offen {KVF}")
        else:
            a(f"s_add_u32 s{sN1}, s{base}, {off}")
            a(f"buffer_load_dwordx4 {dst}, v{vKo}, {srd(rS)}, s{sN1} offen {KVF}")
    def kdots(ring, i):
        k = ring + 4 * i
        a(f"v_dot2_f32_bf16 v{vP+i}, v{k}, v{vQ}, 0")
        for r in range(1, 4):
            a(f"v_dot2_f32_bf16 v{vP+i}, v{k+r}, v{vQ+r}, v{vP+i}")
    def tree(lds_off, addr=None):
        for i in range(8):
            a(f"v_add_f32_dpp v{vP+i}, v{vP+i}, v{vP+i} row_ror:8 row_mask:0xf bank_mask:0x3")
        for i in range(8):
            a(f"v_add_f32_dpp v{vP+i}, v{vP+i+8}, v{vP+i+8} row_ror:8 row_mask:0xf bank_mask:0xc")
        for i in range(4):
            a(f"v_add_f32_dpp v{vP+i}, v{vP+i}, v{vP+i} row_shl:4 row_mask:0xf bank_mask:0x5")
        for i in range(4):
            a(f"v_add_f32_dpp v{vP+i}, v{vP+i+4}, v{vP+i+4} row_shr:4 row_mask:0xf bank_mask:0xa")
        a("s_nop 0")
        for i in range(4):
            a(f"v_add_f32_dpp v{vP+i}, v{vP+i}, v{vP+i} quad_perm:[2,3,0,1] {FULL}")
        a(f"v_cndmask_b32 v{vP}, v{vP}, v{vP+2}, {sp(sCC)}")
        a(f"v_cndmask_b32 v{vP+1}, v{vP+1}, v{vP+3}, {sp(sCC)}")
        a("s_nop 0")
        a(f"v_add_f32_dpp v{vP}, v{vP}, v{vP} quad_perm:[1,0,3,2] {FULL}")
        a(f"v_add_f32_dpp v{vP+1}, v{vP+1}, v{vP+1} quad_perm:[1,0,3,2] {FULL}")
        a(f"v_cndmask_b32 v{vP}, v{vP}, v{vP+1}, {sp(sAA)}")
        rnd_bf16(vP, vP)
        a(f"v_mul_f32 v{vP}, {f32(128 ** -0.5)}, v{vP}")
        a(f"v_cvt_pk_bf16_f32 v{vP}, v{vP}, v{vP}")
        a(f"ds_write_b16 v{vSa if addr is None else addr}, v{vP} offset:{lds_off}")

    lab(KNAME)
    a("s_cmp_ge_u32 s2, 256")
    a("s_cbranch_scc1 L_end")
    a("s_load_dwordx16 s[4:19], s[0:1], 0")
    a("s_load_dwordx8 s[20:27], s[0:1], 64")
    stamp(0)
    a(f"v_lshrrev_b32 v{vT0}, 6, v0")
    a(f"v_lshlrev_b32 v{vFlo}, 8, v0")
    a(f"v_and_b32 v{vL}, 63, v0")
    a(f"v_readfirstlane_b32 s{sW}, v{vT0}")
    a(f"v_lshrrev_b32 v{vG}, 4, v{vL}")
    a(f"v_and_b32 v{vC}, 15, v{vL}")
    a(f"s_and_b32 s{sXc}, s2, 7")
    a(f"s_lshr_b32 s{sKk}, s2, 3")
    if HM == 1:
        a(f"s_and_b32 s{sH1}, s2, 31")
    else:
        a(f"s_lshl_b32 s{sH1}, s{sXc}, 2")
        a(f"s_and_b32 s{sT0}, s{sKk}, 3")
        a(f"s_or_b32 s{sH1}, s{sH1}, s{sT0}")
    a(f"s_lshr_b32 s{sJ1}, s2, 5")
    vxo, vxp, vxa, vwq = vP + 10, vP + 11, vM, vSn
    a(f"v_lshlrev_b32 v{vxo}, 5, v{vL}")
    a(f"v_lshrrev_b32 v{vT0}, 5, v{vL}")
    a(f"v_and_b32 v{vT1}, 31, v{vL}")
    a(f"v_lshlrev_b32 v{vT1}, 3, v{vT1}")
    a(f"v_lshl_add_u32 v{vxp}, v{vT0}, 10, v{vT1}")
    a(f"s_lshl_b32 s{sT0}, s{sW}, 8")
    a(f"v_add_u32 v{vxp}, s{sT0}, v{vxp}")
    a(f"v_lshlrev_b32 v{vC16}, 4, v{vC}")
    a(f"v_lshl_add_u32 v{vwq}, v{vG}, 18, v{vC16}")
    a(f"s_lshl_b32 s{sT0}, s{sW}, 20")
    a(f"s_lshl_b32 s{sT1}, s{sH1}, 8")
    a(f"s_add_u32 s{sT0}, s{sT0}, s{sT1}")
    a(f"v_add_u32 v{vwq}, s{sT0}, v{vwq}")
    a(f"v_lshlrev_b32 v{vKo}, 4, v{vL}")
    jdep(sN0, sJ1, sT0)
    if WB == (10, 11):
        a(f"s_lshl_b32 s{sNb}, s{sW}, 10")
    else:
        a(f"s_and_b32 s{sNb}, s{sW}, 1")
        a(f"s_lshl_b32 s{sNb}, s{sNb}, {WB[0]}")
        a(f"s_lshr_b32 s{sT0}, s{sW}, 1")
        a(f"s_lshl_b32 s{sT0}, s{sT0}, {WB[1]}")
        a(f"s_add_u32 s{sNb}, s{sNb}, s{sT0}")
    a(f"s_add_u32 s{sN0}, s{sN0}, s{sNb}")
    a(f"s_lshl_b32 s{sT0}, s{sH1}, 22")
    a(f"s_add_u32 s{sN0}, s{sN0}, s{sT0}")
    a(f"s_mov_b32 s{sBase0}, s{sN0}")
    a(f"s_add_u32 s{sN0}, s{sN0}, {128 << 20}")
    a(f"s_and_b32 s{sRot}, s{sJ1}, 3")
    a(f"s_lshl_b32 s{sRot}, s{sRot}, 16")
    for r, n in ((rWQ, 4 << 20), (rS, KVB)):
        a(f"s_mov_b32 s{r+2}, {n}")
        a(f"s_mov_b32 s{r+3}, 0x20000")
    a("s_waitcnt lgkmcnt(0)")
    a(f"global_load_dwordx4 {v4(vP)}, v{vxo}, {sp(sX)}")
    a(f"global_load_dwordx4 {v4(vP+4)}, v{vxo}, {sp(sX)} offset:16")
    a(f"global_load_dwordx2 {v2(vP+8)}, v{vxp}, {sp(sX)}")
    for r, p in ((rS, sKp), (rWQ, sWQp)):
        a(f"s_mov_b32 s{r}, s{p}")
        a(f"s_mov_b32 s{r+1}, s{p+1}")
    def wqload(i):
        a(f"s_add_u32 s{sT0}, s{sRot}, {i*8192}")
        a(f"s_and_b32 s{sT0}, s{sT0}, 0x3ffff")
        if NOQ: a(f"s_mov_b32 s{sT0}, 0x7000000")
        a(f"buffer_load_dwordx4 {a4(aWQ+4*(i%16))}, v{vwq}, {srd(rWQ)}, s{sT0} offen {WQF}")
    Gt, Ut, Dn, FB = vF, vF + 8, vF + 16, vF + 24
    vSel = [vQ, vQ + 1, vQ + 2, vQ + 3, vQ1, vQ1 + 1, vQ1 + 2, vQ1 + 3]
    vXn = vP
    XR = [vX1, vX2][:NX]
    bulk = [(f"y{j}", i) for j in range(2 - NY, 2) for i in range(16)] + [(f"x{j}", i) for j in range(NX) for i in range(16)] + [("k", i) for i in range(16)]
    FASTPRO = opts.get("fastpro", False)
    seq = []; qi = 32 if FASTPRO else 0; bi = 0; p = 0
    while qi < 32:
        if MIX[p % len(MIX)] == "q" or bi >= len(bulk): seq.append(("q", qi)); qi += 1
        else: seq.append(bulk[bi]); bi += 1
        p += 1
    nq_end = len(seq)
    seq += bulk[bi:]
    assert sum(k == "q" for k, _ in seq[:NPRE]) <= 16
    issued = []
    def issue1(op):
        kind, i = op
        if kind == "q": wqload(i)
        elif kind == "k": kvload(v4(vR + 4 * i), ioff(i))
        elif kind[0] == "y":
            j = int(kind[1]); kvload(a4(64 + 64 * j + 4 * i), ((NK0 + j) << TS) + ioff(i), sBase0)
        else:
            j = int(kind[1]); kvload(v4(XR[j] + 4 * i), ((NK0 + j) << TS) + ioff(i))
        issued.append(op)
    def younger(op): return min(63, len(issued) - 1 - issued.index(op))
    for op in seq[:NPRE]: issue1(op)
    for r, p, n in ((rWS, sWSp, WS_SIZE), (rDBG, sDBGp, 256), (rOUT, sOUTp, 2048)):
        a(f"s_mov_b32 s{r}, s{p}")
        a(f"s_mov_b32 s{r+1}, s{p+1}")
        a(f"s_mov_b32 s{r+2}, {n}")
        a(f"s_mov_b32 s{r+3}, 0x20000")
    a(f"s_mov_b32 s{sCC}, 0xcccccccc"); a(f"s_mov_b32 s{sCC+1}, 0xcccccccc")
    a(f"s_mov_b32 s{sAA}, 0xaaaaaaaa"); a(f"s_mov_b32 s{sAA+1}, 0xaaaaaaaa")
    a(f"s_mov_b32 s{sOnes}, 0x3f803f80")
    a(f"s_mov_b32 s{sSpin}, 0x80000")
    a(f"s_movk_i32 s{sC4k}, 4096")
    a(f"s_mov_b32 s{sPh}, 0")
    TFL = NK0 + 1
    a(f"s_and_b32 s{sT0}, s{sKk}, 7")
    a(f"s_cmp_eq_u32 s{sT0}, s{sXc}")
    a(f"s_cselect_b32 s{sCons}, 1, 0")
    a(f"s_mov_b32 s{sP}, 99")
    XST = opts.get("xst", "0")
    if XST == "j": a(f"s_bfe_u32 s{sF1}, s2, 0x20005")
    elif XST == "h": a(f"s_bfe_u32 s{sF1}, s2, 0x20003")
    elif XST == "w": a(f"s_mov_b32 s{sF1}, s{sW}")
    else: a(f"s_mov_b32 s{sF1}, 0")
    a(f"s_add_u32 s{sF1}, s{sF1}, 1")
    if opts.get("localv"): a(f"s_add_u32 s{sBase2}, s{sH1}, 32")
    else: a(f"s_add_u32 s{sBase2}, s{sKk}, 32")
    a(f"s_lshl_b32 s{sBase2}, s{sBase2}, 22")
    a(f"s_lshl_b32 s{sT0}, s{sW}, 10")
    a(f"s_add_u32 s{sBase2}, s{sBase2}, s{sNb}")
    a(f"s_lshl_b32 s{sScB}, s{sKk}, 15")
    a(f"s_add_u32 s{sScB}, s{sScB}, s{sT0}")
    a(f"s_add_u32 s{sScB}, s{sScB}, {WS_SC}")
    jdep(sFirst2, sJ1 if opts.get("localv") else sXc, sT0, JB2)
    a(f"s_add_u32 s{sFirst2}, s{sFirst2}, s{sBase2}")
    a(f"s_lshl_b32 s{sCnt}, s{sKk}, 8")
    a(f"s_add_u32 s{sCnt}, s{sCnt}, {WS_CNT}")
    a(f"s_lshl_b32 s{sT0}, s{sH1}, 3")
    a(f"s_add_u32 s{sT0}, s{sT0}, s{sJ1}")
    a(f"s_lshl_b32 s{sPart}, s{sT0}, 10")
    a(f"v_lshlrev_b32 v{vL23}, 23, v{vL}")
    a(f"v_lshlrev_b32 v{vL4}, 2, v{vL}")
    a(f"v_lshlrev_b32 v{vL2}, 1, v{vL}")
    a(f"s_lshl_b32 s{sT0}, s{sW}, 11")
    a(f"v_add_u32 v{vSa}, s{sT0}, v{vL2}")
    a(f"v_add_u32 v{vFlo}, s2, v{vFlo}")
    a(f"v_add_u32 v{vT0}, 31, v{vL}")
    a(f"v_lshrrev_b32 v{vT0}, 6, v{vT0}")
    a(f"v_lshl_add_u32 v{vPa}, v{vT0}, 23, v{vKo}")
    a(f"v_and_b32 v{vT0}, 1, v{vG}")
    a(f"v_lshlrev_b32 v{vT0}, 4, v{vT0}")
    a(f"v_lshl_add_u32 v{vLo}, v{vC}, 5, v{vT0}")
    a(f"v_lshl_add_u32 v{vWoA}, v{vG}, 12, v{vC16}")
    a(f"s_lshr_b32 s{sT0}, s2, 2")
    a(f"s_lshl_b32 s{sT0}, s{sT0}, 16")
    a(f"s_lshl_b32 s{sT1}, s{sW}, 14")
    a(f"s_add_u32 s{sT0}, s{sT0}, s{sT1}")
    a(f"s_and_b32 s{sT1}, s2, 3")
    a(f"s_lshl_b32 s{sT1}, s{sT1}, 8")
    a(f"s_add_u32 s{sT0}, s{sT0}, s{sT1}")
    a(f"v_add_u32 v{vWoA}, s{sT0}, v{vWoA}")
    a(f"v_lshrrev_b32 v{vT0}, 1, v{vG}")
    a(f"v_lshlrev_b32 v{vT0}, 4, v{vT0}")
    a(f"v_lshrrev_b32 v{vT1}, 2, v{vC}")
    a(f"v_add_u32 v{vT0}, v{vT0}, v{vT1}")
    a(f"v_and_b32 v{vT1}, 0x7f, v{vLo}")
    a(f"v_lshl_add_u32 v{vYo}, v{vT0}, 13, v{vT1}")
    a(f"s_and_b32 s{sT0}, s2, 3")
    a(f"s_lshl_b32 s{sT0}, s{sT0}, 15")
    a(f"s_lshr_b32 s{sT1}, s2, 2")
    a(f"s_lshl_b32 s{sT1}, s{sT1}, 7")
    a(f"s_add_u32 s{sT0}, s{sT0}, s{sT1}")
    a(f"s_add_u32 s{sT0}, s{sT0}, {WS_Y}")
    a(f"v_add_u32 v{vYo}, s{sT0}, v{vYo}")
    a(f"s_lshl_b32 s{sT0}, s{sW}, 2")
    a(f"v_add_u32 v{vT0}, s{sT0}, v{vT0}")
    a(f"v_lshl_add_u32 v{vFo}, v{vT0}, 13, v{vT1}")
    a(f"v_add_u32 v{vFo}, {WS_F}, v{vFo}")
    a(f"v_and_b32 v{vXo}, 7, v{vL}")
    a(f"v_lshl_add_u32 v{vXo}, v{vXo}, 2, v{vG}")
    a(f"s_lshl_b32 s{sT0}, s{sCid}, 6")
    a(f"v_lshl_add_u32 v{vXo}, v{vXo}, 1, s{sT0}")
    a(f"v_and_b32 v{vT0}, 1, v{vC}")
    a(f"v_lshlrev_b32 v{vT0}, 4, v{vT0}")
    a(f"v_mov_b32 v{vT1}, 0xffff")
    a(f"v_lshlrev_b32 v{vT0}, v{vT0}, v{vT1}")
    a(f"v_bfe_u32 v{vT1}, v{vC}, 1, 2")
    for r in range(4):
        a(f"v_cmp_eq_u32 vcc, {r}, v{vT1}")
        a("s_nop 1")
        a(f"v_cndmask_b32 v{vMask+r}, 0, v{vT0}, vcc")
    a(f"v_mov_b32 v{vT0}, 0x0c0c0c0c")
    a(f"s_mov_b32 s{sT0}, 0x01000100")
    a(f"s_mov_b32 s{sT1}, 0x03020302")
    for r in range(4):
        a(f"v_bfi_b32 v{vSel[r]}, v{vMask+r}, s{sT0}, v{vT0}")
        a(f"v_bfi_b32 v{vSel[4+r]}, v{vMask+r}, s{sT1}, v{vT0}")
    a(f"v_lshrrev_b32 v{vxa}, 3, v{vC}")
    a(f"v_lshlrev_b32 v{vxa}, 10, v{vxa}")
    a(f"v_lshl_add_u32 v{vxa}, v{vG}, 6, v{vxa}")
    a(f"s_lshl_b32 s{sT0}, s{sW}, 8")
    a(f"v_add_u32 v{vxa}, s{sT0}, v{vxa}")
    a(f"v_mov_b32 v{vT1}, -1")
    a(f"ds_write_b32 v{vL4}, v{vT1} offset:{TK}")
    a(f"ds_write_b32 v{vL4}, v{vT1} offset:{TK+256}")
    a(f"s_mov_b32 s{sFin}, 0")
    ECLR = opts.get("eclr", True)
    def clears(vZ):
        c("reset the hand-off slots this workgroup owns")
        for r in range(4): a(f"v_mov_b32 v{vZ+r}, -1")
        a(f"s_cmp_eq_u32 s{sCons}, 0")
        a("s_cbranch_scc1 L_h1a")
        a(f"s_lshl_b32 s{sT0}, s{sCid}, 13")
        a(f"s_lshl_b32 s{sT1}, s{sW}, 11")
        a(f"s_add_u32 s{sT0}, s{sT0}, s{sT1}")
        a(f"s_add_u32 s{sT0}, s{sT0}, {WS_F}")
        a(f"buffer_store_dwordx4 {v4(vZ)}, v{vKo}, {srd(rWS)}, s{sT0} offen {CS}")
        a(f"buffer_store_dwordx4 {v4(vZ)}, v{vKo}, {srd(rWS)}, s{sT0} offen offset:1024 {CS}")
        lab("L_h1a")
        a(f"s_cmp_lg_u32 s{sW}, 0")
        a("s_cbranch_scc1 L_h1b")
        a(f"buffer_store_dwordx4 {v4(vZ)}, v{vYo}, {srd(rWS)}, 0 offen {CS}")
        a(f"buffer_store_dwordx4 {v4(vZ)}, v{vPa}, {srd(rWS)}, s{sPart} offen {CS}")
        a(f"s_add_u32 s{sT0}, s2, 256")
        a(f"s_lshl_b32 s{sT0}, s{sT0}, 10")
        a(f"buffer_store_dwordx4 {v4(vZ)}, v{vPa}, {srd(rWS)}, s{sT0} offen {CS}")
        a(f"s_cmp_lg_u32 s{sXc}, 0")
        a("s_cbranch_scc1 L_h1b")
        a(f"v_mov_b32 v{vT0}, 0")
        a(f"buffer_store_dword v{vT0}, v{vL23}, {srd(rWS)}, s{sCnt} offen sc1")
        lab("L_h1b")
    if ECLR: clears(vO)
    delay("start")
    c("LayerNorm")
    a(f"s_waitcnt vmcnt({NPRE})")
    stamp(1)
    vs, vmn, vacc0, vacc1, vt, vu = vA0, vA0 + 1, vA0 + 2, vA0 + 3, vA1, vA1 + 1
    a(f"v_dot2_f32_bf16 v{vs}, v{vP}, s{sOnes}, 0")
    for r in range(1, 8):
        a(f"v_dot2_f32_bf16 v{vs}, v{vP+r}, s{sOnes}, v{vs}")
    a("s_nop 1")
    rowred(vs)
    swapadd(vs, vt, 16)
    a(f"v_mul_f32 v{vmn}, {f32(1/512)}, v{vs}")
    a(f"v_mov_b32 v{vacc0}, 0")
    a(f"v_mov_b32 v{vacc1}, 0")
    for r in range(8):
        a(f"v_lshlrev_b32 v{vt}, 16, v{vP+r}")
        a(f"v_and_b32 v{vu}, 0xffff0000, v{vP+r}")
        a(f"v_sub_f32 v{vt}, v{vt}, v{vmn}")
        a(f"v_sub_f32 v{vu}, v{vu}, v{vmn}")
        a(f"v_fmac_f32 v{vacc0}, v{vt}, v{vt}")
        a(f"v_fmac_f32 v{vacc1}, v{vu}, v{vu}")
    a(f"v_add_f32 v{vs}, v{vacc0}, v{vacc1}")
    rowred(vs)
    swapadd(vs, vt, 16)
    a(f"v_mul_f32 v{vs}, {f32(1/512)}, v{vs}")
    rnd_bf16(vs, vs)
    a(f"v_add_f32 v{vs}, {f32(1e-5)}, v{vs}")
    rnd_bf16(vs, vs)
    a(f"v_sqrt_f32 v{vs}, v{vs}")
    rnd_bf16(vmn, vmn)
    rnd_bf16(vs, vs)
    a(f"v_rcp_f32 v{vs}, v{vs}")
    for r in (8, 9):
        a(f"v_lshlrev_b32 v{vt}, 16, v{vP+r}")
        a(f"v_and_b32 v{vu}, 0xffff0000, v{vP+r}")
        a(f"v_sub_f32 v{vt}, v{vt}, v{vmn}")
        a(f"v_sub_f32 v{vu}, v{vu}, v{vmn}")
        a(f"v_cvt_pk_bf16_f32 v{vu}, v{vt}, v{vu}")
        a(f"v_lshlrev_b32 v{vt}, 16, v{vu}")
        a(f"v_and_b32 v{vu}, 0xffff0000, v{vu}")
        a(f"v_mul_f32 v{vt}, v{vt}, v{vs}")
        a(f"v_mul_f32 v{vu}, v{vu}, v{vs}")
        a(f"v_cvt_pk_bf16_f32 v{vP+r}, v{vt}, v{vu}")
    a(f"ds_write_b64 v{vxp}, {v2(vP+8)} offset:{XN}")
    a("s_waitcnt lgkmcnt(0)")
    for t in range(4):
        a(f"s_lshr_b32 s{sT0}, s{sRot}, 12")
        a(f"s_add_u32 s{sT0}, s{sT0}, {16*t}")
        a(f"s_and_b32 s{sT0}, s{sT0}, 63")
        a(f"v_add_u32 v{vt}, s{sT0}, v{vxa}")
        a(f"ds_read_b128 {v4(vXn+4*t)}, v{vt} offset:{XN}")
    c("q projection interleaved with the load stream")
    qdone = [32 if FASTPRO else 0]
    def qstep():
        j = qdone[0]
        A = vA0 if j % 2 == 0 else vA1
        if j == 0: a("s_waitcnt lgkmcnt(0)")
        for r in range(4):
            a(f"v_perm_b32 v{A+r}, v{vXn+j//2}, v{vXn+j//2}, v{vSel[4*(j%2)+r]}")
        a(f"s_waitcnt vmcnt({younger(('q', j))})")
        a("s_nop 0")
        a(f"v_mfma_f32_16x16x32_bf16 {v4(vO)}, {v4(A)}, {a4(aWQ+4*(j%16))}, {'0' if j == 0 else v4(vO)}")
        qdone[0] += 1
    stop = max(NPRE, min(len(seq), nq_end + NPOST))
    for op in seq[NPRE:stop]:
        if op[0] == "q":
            while qdone[0] <= op[1] - 16: qstep()
        issue1(op)
        while qdone[0] < 32 and ("q", qdone[0]) in issued and younger(("q", qdone[0])) >= LAG: qstep()
    while qdone[0] < 32: qstep()
    a(f"v_lshrrev_b32 v{vT0}, 1, v{vG}")
    a(f"v_lshl_add_u32 v{vT0}, v{vT0}, 9, v{vLo}")
    a(f"s_lshl_b32 s{sT0}, s{sW}, 10")
    a(f"v_add_u32 v{vT0}, s{sT0}, v{vT0}")
    a(f"v_mov_b32 v{vM}, {f32(-3.0e38)}")
    a(f"v_mov_b32 v{vLs}, 0")
    a(f"s_mov_b32 s{sT}, 0")
    a(f"s_lshl_b32 s{sT0}, s{sW}, 9")
    a(f"v_add_u32 v{vLo}, s{sT0}, v{vLo}")
    a(f"v_lshlrev_b32 v{vT1}, 3, v{vL}")
    a(f"ds_write_b128 v{vT0}, {v4(vO)} offset:{QP}")
    a("s_waitcnt lgkmcnt(0)")
    a("s_barrier")
    def qfetch(dst, off):
        for w in range(4):
            a(f"ds_read_b64 {v2(vP+2*w)}, v{vT1} offset:{QP+1024*w+off}")
        a("s_waitcnt lgkmcnt(0)")
        for w in range(1, 4):
            a(f"v_add_f32 v{vP}, v{vP}, v{vP+2*w}")
            a(f"v_add_f32 v{vP+1}, v{vP+1}, v{vP+2*w+1}")
        a(f"v_cvt_pk_bf16_f32 v{vP}, v{vP}, v{vP+1}")
        for r in range(4):
            a(f"ds_bpermute_b32 v{dst+r}, v{vC16}, v{vP} offset:{4*r}")
    qfetch(vQ, 512)
    stamp(2)
    for op in seq[stop:]: issue1(op)
    assert [op for op in issued if op[0] == "k"] == [("k", i) for i in range(16)]
    for r in range(4): a(f"v_mov_b32 v{vO+r}, 0")
    a(f"s_add_u32 s{sN0}, s{sN0}, {1 << TS}")
    a("s_waitcnt lgkmcnt(0)")
    c("K loop")
    a(".p2align 6")
    lab("L_kloop")
    for i in range(16):
        a("s_waitcnt vmcnt(15)")
        kdots(vR, i)
        kvload(v4(vR + 4 * i), ioff(i))
    tree(SCL)
    a(f"v_add_u32 v{vSa}, 128, v{vSa}")
    trace(0)
    a(f"s_add_u32 s{sT}, s{sT}, 1")
    a(f"s_add_u32 s{sN0}, s{sN0}, {1 << TS}")
    hooks = [(1, "L_h1"), (TFL, "L_h2"), (NK0 - 1, "L_hb1"), (NK0, "L_hq1"), (NK - 1, "L_hv"), (NK, "L_kend")]
    assert len(set(t for t, _ in hooks)) == len(hooks)
    for t, l in hooks:
        a(f"s_cmp_eq_u32 s{sT}, {t}")
        a(f"s_cbranch_scc1 {l}")
    lab("L_xd")
    a(f"s_sub_u32 s{sT0}, s{sT}, s{sF1}")
    a(f"s_cmp_gt_u32 s{sT0}, 1")
    a("s_cbranch_scc1 L_kloop")
    a(f"v_and_b32 v{vT1}, 0xfffffc7f, v{vSa}")
    a(f"s_cmp_eq_u32 s{sT0}, 1")
    a("s_cbranch_scc1 L_x1")
    for j in range(NX):
        lab(f"L_x{j}")
        for i in range(16): kdots(XR[j], i)
        tree(SCL + (NK0 + j) * 128, vT1)
        if NY:
            a(f"s_cmp_gt_u32 s{sT}, {NK0}")
            a("s_cbranch_scc1 L_kloop")
            for r in range(64): a(f"v_accvgpr_read_b32 v{XR[j]+r}, a{64+64*j+r}")
        a("s_branch L_kloop")
    lab("L_h1")
    if not ECLR: clears(vA0)
    a("s_branch L_xd")
    lab("L_h2")
    a("s_barrier")
    a(f"v_mov_b32 v{vT0}, 1")
    a(f"buffer_store_byte v{vT0}, v{vFlo}, {srd(rDBG)}, 0 offen sc1")
    a("s_branch L_xd")
    lab("L_hb1")
    if opts.get("wtlb", False):
        a(f"s_load_dword s100, {sp(sVp)}, s{sBase0}")
        a(f"s_load_dword s101, {sp(sVp)}, s{sBase2}")
        a(f"s_add_u32 s{sT0}, s{sBase2}, {1 << 21}")
        a(f"s_load_dword s100, {sp(sVp)}, s{sT0}")
        a(f"s_lshl_b32 s{sT0}, s2, 14")
        a(f"s_load_dword s101, {sp(sWOp)}, s{sT0}")
        a(f"s_load_dword s100, {sp(sWGp)}, 0")
        a(f"s_load_dword s101, {sp(sWUp)}, 0")
        a(f"s_load_dword s100, {sp(sWDp)}, 0")
    a(f"s_mov_b32 s{sN0}, s{sBase0}")
    a("s_branch L_xd")
    lab("L_hq1")
    a(f"s_add_u32 s{sF1}, s{sF1}, {NK0 if NY else 99}")
    a(f"v_lshlrev_b32 v{vT1}, 3, v{vL}")
    qfetch(vQ, 0)
    a(f"v_add_u32 v{vSa}, {128*NX}, v{vSa}")
    a(f"s_lshl_b32 s{sT0}, s{sW}, 11")
    a(f"v_add_u32 v{vT0}, s{sT0}, v{vKo}")
    a(f"ds_read_b128 {v4(vA1)}, v{vT0} offset:{SCL}")
    a(f"s_lshl_b32 s{sT0}, s{sPart}, 2")
    a(f"s_lshl_b32 s{sT1}, s{sW}, 10")
    a(f"s_add_u32 s{sT0}, s{sT0}, s{sT1}")
    a(f"s_add_u32 s{sT0}, s{sT0}, {WS_SC}")
    a("s_waitcnt lgkmcnt(0)")
    if not opts.get("noscst"): a(f"buffer_store_dwordx4 {v4(vA1)}, v{vKo}, {srd(rWS)}, s{sT0} offen {CS}")
    stats(vA1, vA0, vA0 + 1)
    a(f"s_sub_u32 s{sT0}, s{sT0}, {WS_SC}")
    a(f"s_lshr_b32 s{sT0}, s{sT0}, 7")
    a(f"s_add_u32 s{sT0}, s{sT0}, {WS_ST}")
    if not opts.get("nostst"): a(f"buffer_store_dwordx2 {v2(vA0)}, v{vL23}, {srd(rWS)}, s{sT0} offen {CS}")
    a("s_branch L_kloop")
    lab("L_hv")
    a(f"s_mov_b32 s{rS}, s{sVp}")
    a(f"s_mov_b32 s{rS+1}, s{sVp+1}")
    a(f"s_mov_b32 s{sN0}, s{sBase0}")
    a("s_branch L_xd")
    lab("L_kend")
    delay("kend")
    stamp(3)
    a(f"v_and_b32 v{vL2}, 0x7c, v{vL2}")
    a(f"s_lshl_b32 s{sT0}, s{sW}, 11")
    a(f"v_add_u32 v{vSa}, s{sT0}, v{vL2}")
    a(f"ds_read_b32 v{vSn}, v{vSa} offset:{SCL+1024}")
    a(f"v_add_u32 v{vT0}, s{sT0}, v{vKo}")
    a(f"ds_read_b128 {v4(vA1)}, v{vT0} offset:{SCL+1024}")
    vSh = vQ
    a(f"v_and_b32 v{vSh}, 1, v{vL}")
    a(f"v_lshlrev_b32 v{vSh}, 4, v{vSh}")
    a(f"s_mov_b32 s{sT}, 0")
    vGp, vGm, vGy = vQ1, vQ1 + 1, vQ1 + 2
    a(f"v_lshrrev_b32 v{vT0}, 3, v{vC}")
    a(f"v_and_b32 v{vT1}, 7, v{vC}")
    a(f"v_lshl_add_u32 v{vT0}, v{vT0}, 8, v{vT1}")
    a(f"s_lshl_b32 s{sT0}, s{sKk}, 3")
    a(f"v_add_u32 v{vT0}, s{sT0}, v{vT0}")
    a(f"v_lshlrev_b32 v{vGm}, 10, v{vT0}")
    a(f"v_lshl_add_u32 v{vGp}, v{vG}, 4, v{vGm}")
    a(f"s_lshr_b32 s{sT0}, s{sXc}, 2")
    a(f"s_lshl_b32 s{sT0}, s{sT0}, 8")
    a(f"s_lshl_b32 s{sT1}, s{sW}, 6")
    a(f"s_add_u32 s{sT0}, s{sT0}, s{sT1}")
    a(f"v_add_u32 v{vGp}, s{sT0}, v{vGp}")
    a(f"s_lshl_b32 s{sT0}, s{sCid}, 13")
    a(f"s_lshl_b32 s{sT1}, s{sW}, 11")
    a(f"s_add_u32 s{sT0}, s{sT0}, s{sT1}")
    a(f"s_add_u32 s{sT0}, s{sT0}, {WS_Y}")
    a(f"v_add_u32 v{vGy}, s{sT0}, v{vKo}")
    vCl = vQ + 1
    a(f"s_lshl_b32 s{sT0}, s{sW}, 8")
    a(f"v_add_u32 v{vCl}, s{sT0}, v{vL4}")
    vSc, vSt = vQ1 + 3, vQ + 2
    a(f"v_mov_b32 v{vSc}, 1.0")
    a(f"s_mov_b32 s{sNa}, s{sN0}")
    a(f"s_mov_b32 s{sNb}, s{sN0}")
    a("s_waitcnt lgkmcnt(0)")
    stats(vA1, vM, vLs)
    c("V loop: vSn = scores (u16) of the block in flight, sN0 = next block")
    a(".p2align 6")
    lab("L_vloop")
    vS, tm, al, pp = vP, vP + 1, vP + 2, vP + 3
    a(f"v_lshrrev_b32 v{vS}, v{vSh}, v{vSn}")
    a(f"v_lshlrev_b32 v{vS}, 16, v{vS}")
    a(f"v_sub_f32 v{pp}, v{vS}, v{vM}")
    a(f"v_mul_f32 v{pp}, {f32(LOG2E)}, v{pp}")
    a(f"v_exp_f32 v{pp}, v{pp}")
    a(f"s_cmp_ge_u32 s{sT}, 7")
    a("s_cbranch_scc1 L_sg")
    a(f"v_add_u32 v{vSa}, 128, v{vSa}")
    a(f"ds_read_b32 v{vSn}, v{vSa} offset:{SCL+1024}")
    a("s_branch L_sreq")
    lab("L_sg")
    a(f"s_cmp_ge_u32 s{sN0}, {KVB}")
    a("s_cbranch_scc1 L_vlast")
    jext(sT0, sN0, sT1, 12)
    a(f"s_bfe_u32 s{sT1}, s{sN0}, {0x30000 + TS}")
    a(f"s_lshl_b32 s{sT1}, s{sT1}, 7")
    a(f"s_add_u32 s{sT0}, s{sT0}, s{sT1}")
    a(f"s_add_u32 s{sT0}, s{sT0}, s{sScB}")
    if not NOSC: a(f"buffer_load_dword v{vSn}, v{vL2}, {srd(rWS)}, s{sT0} offen sc1")
    lab("L_sreq")
    a(f"s_cmp_lt_u32 s{sT}, {SV-2}")
    a("s_cbranch_scc1 L_sdone")
    a(f"s_cmp_lg_u32 s{sW}, 0")
    a("s_cbranch_scc1 L_sdone")
    a(f"v_mov_b32 v{vIdx}, 1")
    a(f"buffer_atomic_add v{vIdx}, v{vL23}, {srd(rWS)}, s{sCnt} offen sc0 sc1")
    lab("L_sdone")
    def softmax():
        a(f"v_mul_f32 v{pp}, v{pp}, v{vSc}")
        a(f"v_cvt_pk_bf16_f32 v{pp}, v{pp}, v{pp}")
        a("s_nop 1")
    softmax()
    def mkAp(i, A):
        for r in range(4):
            a(f"v_and_b32_dpp v{A+r}, v{pp}, v{vMask+r} row_newbcast:{i} {FULL}")
    vecmat(mkAp, 16, lambda i: v4(vR + 4 * i), vO, False, lambda i: a("s_waitcnt vmcnt(15)"), lambda i: kvload(v4(vR + 4 * i), ioff(i), sNa if i < 8 else sNb))
    trace(16)
    a(f"s_add_u32 s{sT}, s{sT}, 1")
    a("s_waitcnt lgkmcnt(0)")
    a(f"s_cmp_ge_u32 s{sT}, {SV-1}")
    a("s_cbranch_scc1 L_dyn")
    if S2 and TS2 != TS:
        a(f"s_mov_b32 s{sT0}, {1 << TS}")
        a(f"s_cmp_gt_u32 s{sT}, 7")
        a(f"s_cselect_b32 s{sT0}, {1 << TS2}, s{sT0}")
        a(f"s_add_u32 s{sNa}, s{sNa}, s{sT0}")
    else:
        a(f"s_add_u32 s{sNa}, s{sNa}, {1 << TS}")
    if S2:
        a(f"s_cmp_eq_u32 s{sT}, 7")
        a(f"s_cselect_b32 s{sNa}, s{sFirst2}, s{sNa}")
        a(f"s_mov_b32 s{sN0}, s{sNa}")
    a(f"s_mov_b32 s{sNb}, s{sNa}")
    lab("L_vhooks")
    a(f"s_cmp_gt_u32 s{sT}, 8")
    a("s_cbranch_scc1 L_vloop")
    LEAD = opts.get("lead", True) and S2 == 0
    for t, l in ((8, "L_comb"), (HF, "L_hfl"), (HF + 1, "L_hck"), (HF + 2, "L_hst")):
        a(f"s_cmp_eq_u32 s{sT}, {t}")
        a(f"s_cbranch_scc1 {l}")
        if t == 8 and LEAD:
            a(f"s_cmp_lg_u32 s{sW}, 0")
            a("s_cbranch_scc1 L_vloop")
    a("s_branch L_vloop")
    lab("L_dyn")
    a(f"s_lshl_b32 s{sT1}, s{sT}, 2")
    a(f"v_mov_b32 v{vT0}, s{sT1}")
    a(f"s_cmp_lg_u32 s{sW}, 0")
    a("s_cbranch_scc1 L_fol")
    a(f"v_readfirstlane_b32 s{sT0}, v{vIdx}")
    a("s_nop 3")
    a(f"s_min_u32 s{sT0}, s{sT0}, 0xffff")
    a(f"v_mov_b32 v{vIdx}, s{sT0}")
    a(f"ds_write_b32 v{vT0}, v{vIdx} offset:{TK}")
    a("s_branch L_got")
    lab("L_fol")
    a(f"ds_read_b32 v{vIdx}, v{vT0} offset:{TK}")
    a("s_waitcnt lgkmcnt(0)")
    a(f"v_readfirstlane_b32 s{sT0}, v{vIdx}")
    a("s_nop 3")
    a(f"s_cmp_eq_u32 s{sT0}, -1")
    a("s_cbranch_scc1 L_fol")
    lab("L_got")
    POOL = 64 - 8 * S2; NF = POOL - NH; A_ = opts.get("fa", 52) - 8 * S2
    a(f"s_sub_u32 s{sT1}, s{sT0}, {A_}")
    a(f"s_min_u32 s{sT1}, s{sT1}, 3")
    a(f"s_lshl_b32 s{sP}, s{sT1}, 5")
    a(f"s_add_u32 s{sP}, s{sP}, s{sKk}")
    a(f"s_cmp_lt_u32 s{sKk}, 24")
    a(f"s_cselect_b32 s{sT1}, 2, 1")
    a(f"s_cmp_ge_u32 s{sT0}, {A_}")
    a(f"s_cselect_b32 s{sT1}, s{sT1}, 0")
    a(f"s_sub_u32 s{sT0}, s{sT0}, s{sT1}")
    a(f"s_cmp_lt_u32 s{sP}, 56")
    a(f"s_cselect_b32 s{sT0}, 0xffff, s{sT0}")
    a(f"s_sub_u32 s{sT1}, s{sT0}, {NF}")
    a(f"s_lshr_b32 s{sT2}, s{sT1}, 1")
    a(f"s_add_u32 s{sT2}, s{sT2}, {NF}")
    a(f"s_and_b32 s{sTm}, s{sT1}, 1")
    a(f"s_cmp_ge_u32 s{sT0}, {NF}")
    a(f"s_cselect_b32 s{sT0}, s{sT2}, s{sT0}")
    a(f"s_cselect_b32 s{sTm}, s{sTm}, 2")
    if opts.get("tkx"):
        a(f"s_cmp_ge_u32 s{sT0}, {POOL}")
        a(f"s_cselect_b32 s{sT1}, 0, s{sKk}")
        a(f"s_and_b32 s{sT1}, s{sT1}, 7")
        a(f"s_lshl_b32 s{sT1}, s{sT1}, {opts['tkx'] - 1}")
        a(f"s_xor_b32 s{sT0}, s{sT0}, s{sT1}")
    jdep(sT1, sT0, sT2, JB2)
    a(f"s_lshr_b32 s{sT2}, s{sT0}, 3")
    if S2: a(f"s_add_u32 s{sT2}, s{sT2}, {S2}")
    a(f"s_lshl_b32 s{sT2}, s{sT2}, {TS2}")
    a(f"s_add_u32 s{sT1}, s{sT1}, s{sT2}")
    a(f"s_add_u32 s{sT1}, s{sT1}, s{sBase2}")
    a(f"s_cmp_ge_u32 s{sT0}, {POOL}")
    a(f"s_cselect_b32 s{sN0}, {KVB}, s{sT1}")
    a(f"s_cmp_eq_u32 s{sTm}, 1")
    a(f"s_cselect_b32 s{sNa}, {KVB}, s{sN0}")
    a(f"s_cmp_eq_u32 s{sTm}, 0")
    a(f"s_cselect_b32 s{sNb}, {KVB}, s{sN0}")
    a("s_branch L_vhooks")
    lab("L_hfl")
    delay("v4")
    a(f"buffer_load_dword v{vFl}, v{vL4}, {srd(rDBG)}, 0 offen sc1")
    a("s_branch L_vloop")
    lab("L_hck")
    a(f"v_cmp_ne_u32 vcc, 0x01010101, v{vFl}")
    a("s_nop 4")
    a("s_cbranch_vccz L_hok")
    a(f"s_sub_u32 s{sSpin}, s{sSpin}, 1")
    a("s_cbranch_scc1 L_hok")
    a("s_sleep 4")
    a(f"buffer_load_dword v{vFl}, v{vL4}, {srd(rDBG)}, 0 offen sc1")
    a("s_waitcnt vmcnt(0)")
    a("s_branch L_hck")
    lab("L_hok")
    a(f"v_and_b32 v{vT0}, 31, v{vL}")
    a(f"v_lshlrev_b32 v{vT0}, 3, v{vT0}")
    a(f"s_lshl_b32 s{sT0}, s{sKk}, 8")
    a(f"s_add_u32 s{sT0}, s{sT0}, {WS_ST}")
    a(f"buffer_load_dwordx2 {v2(vSt)}, v{vT0}, {srd(rWS)}, s{sT0} offen sc1")
    a(f"s_cmp_eq_u32 s{sCons}, 0")
    a("s_cbranch_scc1 L_vloop")
    a(f"global_load_ushort v{vT2}, v{vXo}, {sp(sX)}")
    if opts.get("wout", False):
        a(f"buffer_load_ushort v{vT1}, v{vXo}, {srd(rOUT)}, 0 offen")
    a("s_branch L_vloop")
    lab("L_hst")
    a(f"v_mov_b32 v{vP}, v{vSt}")
    rowred(vP, "max")
    swapop(vP, vP + 1, 16, "max")
    a(f"v_sub_f32 v{vSt}, v{vSt}, v{vP}")
    a(f"v_mul_f32 v{vSt}, {f32(LOG2E)}, v{vSt}")
    a(f"v_exp_f32 v{vSt}, v{vSt}")
    a("s_nop 0")
    a(f"v_mul_f32 v{vSt+1}, v{vSt}, v{vSt+1}")
    a(f"v_mov_b32 v{vSt}, v{vP}")
    rowred(vSt + 1)
    swapop(vSt + 1, vP + 1, 16, "add")
    a(f"v_rcp_f32 v{vSt+1}, v{vSt+1}")
    if LEAD:
        a(f"v_mov_b32 v{vP}, 0")
        a(f"ds_write_b64 v{vP}, {v2(vSt)} offset:{MLS+64}")
    a("s_branch L_vloop")
    lab("L_vlast")
    delay("vlast")
    G = vX1 + 16
    a(f"buffer_load_dwordx2 {v2(G+4)}, v{vGm}, {srd(rWS)}, 0 offen offset:512 sc1")
    for i in range(4): a(f"global_load_dwordx4 {a4(aWO+4*i)}, v{vWoA}, {sp(sWOp)} offset:{1024*i} {KVF}")
    a(f"s_cmp_lt_u32 s{sP}, {0 if NOFFN else 56}")
    a(f"s_cselect_b32 s{rWQ+2}, 1835008, 0")
    a(f"v_lshrrev_b32 v{vT0}, 2, v{vL}")
    a(f"s_movk_i32 s{sT1}, 3584")
    a(f"v_mul_u32_u24 v{vT0}, s{sT1}, v{vT0}")
    a(f"v_and_b32 v{vT1}, 0x30, v{vKo}")
    a(f"s_mul_i32 s{sT1}, s{sW}, {128*3584}")
    a(f"s_lshl_b32 s{sT2}, s{sP}, 6")
    a(f"s_add_u32 s{sT1}, s{sT1}, s{sT2}")
    a(f"v_add3_u32 v{vT0}, v{vT0}, v{vT1}, s{sT1}")
    FPS = opts.get("fps", 1)
    def dn_addr():
        a(f"v_lshl_add_u32 v{vT1}, v{vG}, 10, v{vC16}")
        a(f"s_lshl_b32 s{sT1}, s{sP}, 15")
        a(f"s_lshl_b32 s{sT2}, s{sW}, 8")
        a(f"s_add_u32 s{sT1}, s{sT1}, s{sT2}")
        a(f"v_add_u32 v{vT1}, s{sT1}, v{vT1}")
    if FPS > 1: dn_addr()
    softmax()
    fl = [("g", i) for i in range(8)] + [("u", i) for i in range(8)] + [("d", i) for i in range(8)]
    nis = [5]
    def fissue(n):
        for kind, i in fl[:n]:
            if i == 0:
                p = {"g": sWGp, "u": sWUp, "d": sWDp}[kind]
                a(f"s_mov_b32 s{rWQ}, s{p}")
                a(f"s_mov_b32 s{rWQ+1}, s{p+1}")
            if kind == "d":
                a(f"s_mov_b32 s{sT0}, {4096*i}")
                a(f"buffer_load_dwordx4 {a4(aDn+4*i)}, v{vT1}, {srd(rWQ)}, s{sT0} offen {KVF}")
            else:
                a(f"s_mov_b32 s{sT0}, {16*3584*i}")
                a(f"buffer_load_dwordx4 {a4(aGU+(32 if kind == 'u' else 0)+4*i)}, v{vT0}, {srd(rWQ)}, s{sT0} offen {FFF}")
            nis[0] += 1
        del fl[:n]
    vecmat(mkAp, 16, lambda i: v4(vR + 4 * i), vO, False, lambda i: a(f"s_waitcnt vmcnt({15 - i + nis[0]})"), lambda i: fissue(FPS))
    a(f"s_add_u32 s{sT}, s{sT}, 1")
    lab("L_tail")
    a(f"s_mov_b32 s{sFin}, 1")
    stamp(4)
    if NOTAIL:
        stamp(5); stamp(6)
        a("s_branch L_fin")
    a(f"s_cmp_lg_u32 s{sPh}, 0")
    a("s_cbranch_scc1 L_comb1")
    lab("L_comb")
    a(f"s_lshl_b32 s{sT0}, s{sW}, 3")
    a(f"s_add_u32 s{sT0}, s{sT0}, s{sPh}")
    a(f"v_mov_b32 v{vP+3}, s{sT0}")
    a(f"v_add_u32 v{vP+2}, s{sPh}, v{vLo}")
    a(f"v_mov_b32 v{vP}, v{vM}")
    a(f"v_mov_b32 v{vP+1}, v{vLs}")
    a(f"ds_write_b128 v{vP+2}, {v4(vO)} offset:{OP}")
    a(f"ds_write_b64 v{vP+3}, {v2(vP)} offset:{MLS}")
    a(f"v_and_b32 v{vP+4}, 3, v{vL}")
    a(f"v_lshl_add_u32 v{vP+4}, v{vP+4}, 3, s{sPh}")
    a(f"v_and_b32 v{vP+5}, 0x1ff, v{vKo}")
    a(f"v_add_u32 v{vP+5}, s{sPh}, v{vP+5}")
    a("s_waitcnt lgkmcnt(0)")
    a("s_barrier")
    a(f"s_cmp_lg_u32 s{sW}, 0")
    a("s_cbranch_scc1 L_comb_done")
    CB = vX1
    a(f"ds_read_b64 {v2(vP)}, v{vP+4} offset:{MLS}")
    for w in range(4):
        a(f"ds_read_b128 {v4(CB+4*w)}, v{vP+5} offset:{OP+512*w}")
    a(f"s_waitcnt lgkmcnt({0 if STAMP else 4})")
    mx, e, ew, oo = vP + 2, vP + 3, vP + 4, vP + 8
    a(f"v_max_f32_dpp v{mx}, v{vP}, v{vP} quad_perm:[2,3,0,1] {FULL}")
    a("s_nop 1")
    a(f"v_max_f32_dpp v{mx}, v{mx}, v{mx} quad_perm:[1,0,3,2] {FULL}")
    a(f"v_sub_f32 v{ew}, v{vP}, v{mx}")
    a(f"v_mul_f32 v{ew}, {f32(LOG2E)}, v{ew}")
    a(f"v_exp_f32 v{ew}, v{ew}")
    a("s_nop 0")
    a(f"v_mul_f32 v{e}, v{ew}, v{vP+1}")
    a("s_waitcnt lgkmcnt(0)")
    for r in range(4):
        a(f"v_mul_f32_dpp v{oo+r}, v{ew}, v{CB+r} quad_perm:[0,0,0,0] {FULL}")
    a(f"v_add_f32_dpp v{e}, v{e}, v{e} quad_perm:[2,3,0,1] {FULL}")
    for w in range(1, 4):
        for r in range(4):
            a(f"v_fmac_f32_dpp v{oo+r}, v{ew}, v{CB+4*w+r} quad_perm:[{w},{w},{w},{w}] {FULL}")
    a(f"v_add_f32_dpp v{oo+1}, v{e}, v{e} quad_perm:[1,0,3,2] row_mask:0xc bank_mask:0xf")
    a(f"v_mov_b32_dpp v{oo}, v{mx} quad_perm:[0,1,2,3] row_mask:0xc bank_mask:0xf")
    for r in range(4): a(f"v_min_u32 v{oo+r}, -2, v{oo+r}")
    a(f"buffer_store_dwordx4 {v4(oo)}, v{vPa}, {srd(rWS)}, s{sPart} offen sc1")
    lab("L_comb_done")
    a(f"s_movk_i32 s{sPh}, {PHOFF}")
    a(f"s_add_u32 s{sT0}, s2, 256")
    a(f"s_lshl_b32 s{sPart}, s{sT0}, 10")
    if LEAD:
        a(f"v_mov_b32 v{vT0}, 0")
        a(f"ds_read_b64 {v2(vSt)}, v{vT0} offset:{MLS+64}")
        a("s_waitcnt lgkmcnt(0)")
    a(f"v_mov_b32 v{vM}, v{vSt}")
    a(f"v_mov_b32 v{vSc}, v{vSt+1}")
    for r in range(4): a(f"v_mov_b32 v{vO+r}, 0")
    a(f"v_and_b32 v{vPa}, 0x1ff, v{vLo}")
    a(f"v_lshrrev_b32 v{vLs}, 1, v{vG}")
    a(f"v_lshl_add_u32 v{vPa}, v{vLs}, 23, v{vPa}")
    a(f"s_cmp_eq_u32 s{sFin}, 0")
    a("s_cbranch_scc1 L_vloop")
    lab("L_comb1")
    a("s_nop 5")
    a(f"ds_write_b128 v{vLo}, {v4(vO)} offset:{OP+PHOFF}")
    a("s_waitcnt lgkmcnt(0)")
    a("s_barrier")
    a(f"s_cmp_lg_u32 s{sW}, 0")
    a("s_cbranch_scc1 L_gather")
    for w in range(1, 4):
        a(f"ds_read_b128 {v4(CB+4*w)}, v{vLo} offset:{OP+PHOFF+512*w}")
    for w in range(1, 4):
        a(f"s_waitcnt lgkmcnt({0 if STAMP else 3-w})")
        for r in range(4): a(f"v_add_f32 v{vO+r}, v{vO+r}, v{CB+4*w+r}")
    for r in range(4): a(f"v_min_u32 v{CB+r}, -2, v{vO+r}")
    a(f"buffer_store_dwordx4 {v4(CB)}, v{vPa}, {srd(rWS)}, s{sPart} offen {HS}")
    lab("L_gather")
    a(f"s_cmp_ge_u32 s{sP}, {0 if NOFFN else 56}")
    a("s_cbranch_scc1 L_gather2")
    if FPS == 1:
        dn_addr()
        assert [k for k, _ in fl] == ["d"] * 8
        fissue(8)
    assert not fl
    c("FFN stage 1")
    a(f"s_lshl_b32 s{sT0}, s{sW}, 14")
    a(f"v_add_u32 v{vT0}, s{sT0}, v{vKo}")
    a("s_waitcnt vmcnt(8)")
    for i in range(16):
        a(f"ds_write_b128 v{vT0}, {a4(aGU+4*i)} offset:{GU+1024*i}")
    a(f"v_lshrrev_b32 v{vT0}, 2, v{vC}")
    a(f"v_lshl_add_u32 v{vT0}, v{vG}, 3, v{vT0}")
    a(f"v_lshlrev_b32 v{vT0}, 6, v{vT0}")
    a(f"v_and_b32 v{vT1}, 1, v{vC}")
    a(f"v_lshl_add_u32 v{vT0}, v{vT1}, 3, v{vT0}")
    a(f"v_bfe_u32 v{vIdx}, v{vC}, 1, 1")
    a(f"v_lshl_add_u32 v{vT0}, v{vIdx}, 13, v{vT0}")
    a(f"v_add_u32 v{vT0}, s{sT0}, v{vT0}")
    a(f"v_lshlrev_b32 v{vT1}, 10, v{vT1}")
    a(f"v_lshl_add_u32 v{vT1}, v{vG}, 4, v{vT1}")
    a(f"s_lshl_b32 s{sT0}, s{sW}, 8")
    a(f"v_add_u32 v{vT1}, s{sT0}, v{vT1}")
    a("s_waitcnt lgkmcnt(0)")
    for t in range(4):
        a(f"ds_read_b128 {v4(vP+4*t)}, v{vT1} offset:{XN+64*t}")
    DD = vX1 + 32
    for cg in range(4):
        for t in range(4):
            for hh in range(2):
                a(f"ds_read_b64_tr_b16 {v2(vR+16*cg+4*t+2*hh)}, v{vT0} offset:{GU+2048*t+256*hh+16*cg}")
        a("s_waitcnt lgkmcnt(0)")
        for t in range(4):
            a(f"v_mfma_f32_16x16x32_bf16 {v4(DD+4*cg)}, {v4(vP+4*t)}, {v4(vR+16*cg+4*t)}, {'0' if t == 0 else v4(DD+4*cg)}")
    a(f"s_lshl_b32 s{sT0}, s{sW}, 9")
    a(f"v_lshl_add_u32 v{vT0}, v{vC}, 2, s{sT0}")
    a("s_nop 7")
    for cg in range(4):
        a(f"ds_write_b32 v{vT0}, v{DD+4*cg} offset:{FP+128*cg}")
        a(f"ds_write_b32 v{vT0}, v{DD+4*cg+1} offset:{FP+128*cg+64}")
    a("s_waitcnt lgkmcnt(0)")
    a("s_barrier")
    c("FFN stage 2")
    for w in range(4):
        a(f"ds_read2st64_b32 {v2(vP+2*w)}, v{vL4} offset0:{(FP+512*w)//256} offset1:{(FP+512*w)//256+1}")
    a(f"v_lshrrev_b32 v{vT0}, 3, v{vC}")
    a(f"v_lshlrev_b32 v{vT0}, 6, v{vT0}")
    a(f"v_lshl_add_u32 v{vT0}, v{vG}, 2, v{vT0}")
    a("s_waitcnt lgkmcnt(0)")
    for w in range(1, 4):
        a(f"v_add_f32 v{vP}, v{vP}, v{vP+2*w}")
        a(f"v_add_f32 v{vP+1}, v{vP+1}, v{vP+2*w+1}")
    for j in range(2):
        rnd_bf16(vP + j, vP + j)
        silu(vP + 2 + j, vP + j)
        a(f"v_mul_f32_dpp v{vP+2+j}, v{vP+j}, v{vP+2+j} row_ror:8 {FULL}")
        a(f"v_cvt_pk_bf16_f32 v{vP+2+j}, v{vP+2+j}, v{vP+2+j}")
    for i in range(8):
        cg = i >> 1
        a(f"ds_bpermute_b32 v{vP+4+i}, v{vT0}, v{vP+2+(cg>>1)} offset:{((cg&1)*32+4*(i&1))*4}")
    a("s_waitcnt lgkmcnt(0)")
    a("s_waitcnt vmcnt(0)")
    def mkAh(i, A):
        for r in range(4):
            a(f"v_and_b32 v{A+r}, v{vP+4+i}, v{vMask+r}")
    vecmat(mkAh, 8, lambda i: a4(aDn + 4 * i), DD, True)
    a(f"s_lshl_b32 s{sT0}, s{sP}, 7")
    a("s_nop 6")
    for r in range(4): a(f"v_min_u32 v{DD+r}, -2, v{DD+r}")
    a(f"buffer_store_dwordx4 {v4(DD)}, v{vFo}, {srd(rWS)}, s{sT0} offen sc1")
    lab("L_gather2")
    delay("gather")
    stamp(5)
    GS = [vR + 4 * j for j in range(NC)] + [G]
    def g_loads(B=None):
        if B is None: B = GS[0] if NC > 1 else G
        a(f"buffer_load_dwordx4 {v4(B)}, v{vGp}, {srd(rWS)}, 0 offen {HL}")
    def m_loads():
        a(f"buffer_load_dwordx2 {v2(G+4)}, v{vGm}, {srd(rWS)}, 0 offen offset:512 sc1")
    g_loads()
    a("s_waitcnt vmcnt(1)")
    a(f"v_mov_b32 v{G+6}, 0")
    a("s_mov_b32 exec_lo, 0x00ff00ff")
    a("s_mov_b32 exec_hi, 0x00ff00ff")
    poll("L_pm", m_loads, vP, G + 4, 3, first_wait=False)
    P8 = ("quad_perm:[1,0,3,2]", "quad_perm:[2,3,0,1]", "row_half_mirror")
    wt = G + 6
    for n, p in enumerate(P8):
        s_ = G + 4 if n == 0 else wt
        a("s_nop 1")
        a(f"v_max_f32_dpp v{wt}, v{s_}, v{s_} {p} {FULL}")
    a(f"v_sub_f32 v{wt}, v{G+4}, v{wt}")
    a(f"v_mul_f32 v{wt}, {f32(LOG2E)}, v{wt}")
    a(f"v_exp_f32 v{wt}, v{wt}")
    a("s_nop 0")
    a(f"v_mul_f32 v{G+4}, v{wt}, v{G+5}")
    for p in P8:
        a("s_nop 1")
        a(f"v_add_f32_dpp v{G+4}, v{G+4}, v{G+4} {p} {FULL}")
    a(f"v_rcp_f32 v{G+4}, v{G+4}")
    a(f"v_mov_b32 v{G+5}, 1.0")
    a(f"v_mul_f32 v{wt}, v{wt}, v{G+4}")
    a("s_nop 0")
    a(f"v_mov_b32_dpp v{wt}, v{G+5} quad_perm:[0,1,2,3] row_mask:0xf bank_mask:0xc")
    if NC > 1: ppoll("L_pg", g_loads, vP, GS, 4, 1, True)
    else: poll("L_pg", g_loads, vP, G, 4, back=opts.get("bg", 0), many=opts.get("mg"))
    if opts.get("tstamp"): stamp(1)
    for r in range(4): a(f"v_mul_f32 v{G+r}, v{wt}, v{G+r}")
    for p in P8:
        for r in range(4):
            a(f"v_add_f32_dpp v{G+r}, v{G+r}, v{G+r} {p} {FULL}")
    for r in range(4): a(f"v_cvt_pk_bf16_f32 v{G+r}, v{G+r}, v{G+r}")
    def mkAo(i, A):
        for r in range(4):
            a(f"v_and_b32 v{A+r}, v{G+i}, v{vMask+r}")
    vecmat(mkAo, 4, lambda i: a4(aWO + 4 * i), vO, True)
    a(f"s_lshl_b32 s{sT0}, s{sW}, 10")
    a(f"v_add_u32 v{vP}, s{sT0}, v{vKo}")
    a("s_nop 5")
    a(f"ds_write_b128 v{vP}, {v4(vO)} offset:{QP}")
    if opts.get("tstamp"): stamp(2)
    a("s_waitcnt lgkmcnt(0)")
    a("s_barrier")
    a(f"s_cmp_lg_u32 s{sW}, 0")
    a("s_cbranch_scc1 L_ydone")
    for w in range(1, 4):
        a(f"ds_read_b128 {v4(G+4*w)}, v{vKo} offset:{QP+1024*w}")
    for w in range(1, 4):
        a(f"s_waitcnt lgkmcnt({0 if STAMP else 3-w})")
        for r in range(4): a(f"v_add_f32 v{vO+r}, v{vO+r}, v{G+4*w+r}")
    for r in range(4): a(f"v_min_u32 v{vO+r}, -2, v{vO+r}")
    a(f"buffer_store_dwordx4 {v4(vO)}, v{vYo}, {srd(rWS)}, 0 offen {HS}")
    lab("L_ydone")
    stamp(6)
    a(f"s_cmp_eq_u32 s{sCons}, 0")
    a("s_cbranch_scc1 L_fin")
    Y = vF
    a(f"s_mov_b32 s{sT2}, {WS_F - WS_Y}")
    a(f"s_cmp_eq_u32 s{sW}, 3")
    a(f"s_cselect_b32 s{sT1}, {WS_SIZE}, s{sT2}")
    YS = [vR + 32 + 8 * j for j in range(NC)] + [Y]
    def y_loads(B=None):
        if B is None: B = YS[0] if NC > 1 else Y
        for i in range(2):
            a(f"buffer_load_dwordx4 {v4(B+4*i)}, v{vGy}, {srd(rWS)}, 0 offen offset:{i*1024} {HL}")
    def f_loads():
        a(f"buffer_load_dwordx4 {v4(Y+8)}, v{vGy}, {srd(rWS)}, s{sT2} offen sc1")
        a(f"buffer_load_dwordx4 {v4(Y+12)}, v{vGy}, {srd(rWS)}, s{sT1} offen offset:1024 sc1")
    f_loads()
    y_loads()
    a(f"v_lshlrev_b32 v{vT2}, 16, v{vT2}")
    a(f"v_bfe_u32 v{vT0}, v{vL}, 3, 1")
    a(f"v_lshl_add_u32 v{vXo}, v{vT0}, 20, v{vXo}")
    a("s_waitcnt vmcnt(2)")
    if not NOFFN: poll("L_pf", f_loads, vP, Y + 8, 8, first_wait=False)
    for r in range(4): a(f"v_add_f32 v{Y+8+r}, v{Y+8+r}, v{Y+12+r}")
    reduce345(Y + 8)
    a(f"ds_write_b32 v{vCl}, v{Y+8} offset:{CF}")
    if NC > 1: ppoll("L_py", y_loads, vP, YS, 8, 2, True)
    else: poll("L_py", y_loads, vP, Y, 8, back=opts.get("by", 0), many=opts.get("my"))
    if opts.get("tstamp"): stamp(3)
    for r in range(4): a(f"v_add_f32 v{Y+r}, v{Y+r}, v{Y+4+r}")
    reduce345(Y)
    a(f"ds_write_b32 v{vCl}, v{Y} offset:{CY}")
    a("s_waitcnt lgkmcnt(0)")
    a("s_barrier")
    a(f"s_cmp_lg_u32 s{sW}, 0")
    a("s_cbranch_scc1 L_fin")
    Z = vF + 16
    for w in range(4):
        a(f"ds_read_b32 v{Z+w}, v{vCl} offset:{CF+256*w}")
    for w in range(1, 4):
        a(f"ds_read_b32 v{Z+4+w}, v{vCl} offset:{CY+256*w}")
    a(f"s_waitcnt lgkmcnt({0 if STAMP else 3})")
    a(f"v_add_f32 v{Z}, v{Z}, v{Z+1}")
    a(f"v_add_f32 v{Z+2}, v{Z+2}, v{Z+3}")
    a(f"v_add_f32 v{Z}, v{Z}, v{Z+2}")
    rnd_bf16(Z, Z)
    a(f"v_mul_f32 v{Z+1}, {f32(-LOG2E)}, v{Z}")
    a(f"v_exp_f32 v{Z+1}, v{Z+1}")
    a("s_waitcnt lgkmcnt(0)")
    a(f"v_add_f32 v{Y}, v{Y}, v{Z+5}")
    a(f"v_add_f32 v{Z+1}, 1.0, v{Z+1}")
    a(f"v_rcp_f32 v{Z+1}, v{Z+1}")
    a(f"v_add_f32 v{Z+6}, v{Z+6}, v{Z+7}")
    a(f"v_add_f32 v{Y}, v{Y}, v{Z+6}")
    a(f"v_mul_f32 v{Z+1}, v{Z}, v{Z+1}")
    a(f"v_cvt_pk_bf16_f32 v{Y}, v{Y}, v{Z+1}")
    a(f"v_and_b32 v{Z+1}, 0xffff0000, v{Y}")
    a(f"v_lshlrev_b32 v{Y}, 16, v{Y}")
    a(f"v_mul_f32 v{Y}, v{Y}, v{Z+1}")
    rnd_bf16(Y, Y)
    a(f"v_add_f32 v{Y}, v{Y}, v{vT2}")
    a(f"v_cvt_pk_bf16_f32 v{Y}, v{Y}, v{Y}")
    a(f"buffer_store_short v{Y}, v{vXo}, {srd(rOUT)}, 0 offen {opts.get('of', '')}")
    lab("L_fin")
    if STAMP:
        stamp(7)
        a("s_waitcnt lgkmcnt(0)")
        a(f"s_lshl_b32 s{sT0}, s2, 2")
        a(f"s_add_u32 s{sT0}, s{sT0}, s{sW}")
        a(f"s_lshl_b32 s{sT0}, s{sT0}, 5")
        a(f"s_add_u32 s{sT0}, s{sT0}, {WS_DBG}")
        for k in range(8): a(f"v_mov_b32 v{vP+4+k}, s{sSt+2*k}")
        a(f"v_lshl_or_b32 v{vP+4}, v{vP+4}, 8, s{sT}")
        a(f"buffer_store_dwordx4 {v4(vP+4)}, v{vL23}, {srd(rWS)}, s{sT0} offen")
        a(f"buffer_store_dwordx4 {v4(vP+8)}, v{vL23}, {srd(rWS)}, s{sT0} offen offset:16")
    lab("L_end")
    a("s_endpgm")
    body = "\n".join(o)
    txt = HEADER + f"; @launch grid=(256,1,1) block=(256,1,1) lds={LDS}\n"
    txt += """;
"""
    txt += f""".amdgcn_target "amdgcn-amd-amdhsa--gfx950"
.text
.globl {KNAME}
.p2align 8
.type {KNAME},@function
{body}
.section .rodata,"a"
.p2align 6
.amdhsa_kernel {KNAME}
  .amdhsa_next_free_vgpr 448
  .amdhsa_next_free_sgpr 102
  .amdhsa_accum_offset 256
  .amdhsa_group_segment_fixed_size 0
  .amdhsa_kernarg_size 96
  .amdhsa_user_sgpr_count 2
  .amdhsa_user_sgpr_kernarg_segment_ptr 1
  .amdhsa_system_sgpr_workgroup_id_x 1
  .amdhsa_float_denorm_mode_32 3
.end_amdhsa_kernel
"""
    return txt

if __name__ == "__main__":
    out = sys.argv[1]
    opts = eval(sys.argv[2]) if len(sys.argv) > 2 else {}
    open(out, "w").write(gen(opts))
```
